```python
import torch

def _softmax(x, axis=-1):
    return torch.softmax(x, dim=axis)

def _gelu(x):
    return torch.nn.functional.gelu(x, approximate='tanh')

def _silu(x):
    return torch.nn.functional.silu(x)

def _sigmoid(x):
    return torch.sigmoid(x)

def _layernorm(x, axis=-1, eps=1e-05):
    m = x.mean(dim=axis, keepdim=True)
    v = x.var(dim=axis, keepdim=True, unbiased=False)
    return (x - m) / torch.sqrt(v + eps)

def _scatter_add(tgt, idx, src, axis=0):
    return tgt.clone().index_add_(axis, idx, src)

def _segment_sum(src, seg, n):
    out = torch.zeros((n,) + src.shape[1:], dtype=src.dtype)
    return out.index_add_(0, seg, src)

def _pad(x, pw):
    flat = tuple((v for pair in reversed(pw) for v in pair))
    return torch.nn.functional.pad(x, flat)
kernel_name = 'gated_mix__memory_aug_recurrent_mem_tr__dense_activation_squared_relu__prompt'

def setup_inputs():

    _w = lambda a: (lambda t: t.to(torch.bfloat16) if t.is_floating_point() else t)(torch.as_tensor(a))

    def _A_setup():
        B, S, Dm = (1, 2048, 512)
        H, Dh = (32, 128)
        M, seg = (8, 32)
        seg = min(seg, S)
        S = S // seg * seg
        return {'x': _w((lambda *s: torch.randn(*s, dtype=torch.bfloat16) * 0.05)(B, S, Dm)), 'mem0': _w((lambda *s: torch.randn(*s, dtype=torch.bfloat16) * 0.8)(B, M, Dm)), 'Wq': _w((lambda *s: torch.randn(*s, dtype=torch.bfloat16) * 1.6)(Dm, H, Dh) * Dm ** (-0.5)), 'Wk': _w((lambda *s: torch.randn(*s, dtype=torch.bfloat16) * 1.6)(Dm, H, Dh) * Dm ** (-0.5)), 'Wv': _w((lambda *s: torch.randn(*s, dtype=torch.bfloat16) * 0.8)(Dm, H, Dh) * Dm ** (-0.5)), 'Wo': _w((lambda *s: torch.randn(*s, dtype=torch.bfloat16) * 0.8)(H, Dh, Dm) * (H * Dh) ** (-0.5)), 'seg_len': seg}
    _A_in = _A_setup()

    def _B_setup():
        B, S, D, F = (1, 2048, 512, 1792)
        return {'x': _w((lambda *s: torch.randn(*s, dtype=torch.bfloat16) * 0.05)(B, S, D)), 'w1': _w((lambda *s: torch.randn(*s, dtype=torch.bfloat16) * 0.05)(D, F)), 'b1': _w((lambda *s: torch.randn(*s, dtype=torch.bfloat16) * 0.1)(F)), 'w2': _w((lambda *s: torch.randn(*s, dtype=torch.bfloat16) * 0.05)(F, D)), 'b2': _w((lambda *s: torch.randn(*s, dtype=torch.bfloat16) * 0.05)(D))}
    _B_in = _B_setup()
    return {'A_x': _A_in['x'], 'A_mem0': _A_in['mem0'], 'A_Wq': _A_in['Wq'], 'A_Wk': _A_in['Wk'], 'A_Wv': _A_in['Wv'], 'A_Wo': _A_in['Wo'], 'A_seg_len': _A_in['seg_len'], 'B_x': _B_in['x'], 'B_w1': _B_in['w1'], 'B_b1': _B_in['b1'], 'B_w2': _B_in['w2'], 'B_b2': _B_in['b2'], 'gate_w': _w((lambda *s: torch.randn(*s, dtype=torch.bfloat16) * 0.05)(512) * 16.0)}

def reference(A_x, A_mem0, A_Wq, A_Wk, A_Wv, A_Wo, A_seg_len, B_x, B_w1, B_b1, B_w2, B_b2, gate_w):

    def _A_ref(x, mem0, Wq, Wk, Wv, Wo, seg_len):
        B, S, Dm = x.shape
        H, Dh = (Wq.shape[1], Wq.shape[2])
        M = mem0.shape[1]
        scale = Dh ** (-0.5)
        n_seg = S // seg_len
        L = M + seg_len
        idx = torch.arange(L)
        mask = (idx[:, None] < M) | (idx[:, None] >= idx[None, :])
        mem = mem0
        outs = []
        for s in range(n_seg):
            xs = x[:, s * seg_len:(s + 1) * seg_len, :].clone()
            h = torch.concatenate([mem, xs], axis=1)
            q = torch.einsum('btd,dhe->bhte', h, Wq)
            k = torch.einsum('btd,dhe->bhte', h, Wk)
            v = torch.einsum('btd,dhe->bhte', h, Wv)
            scores = torch.einsum('bhqe,bhke->bhqk', q, k) * scale
            scores = torch.where(mask[None, None], scores, -1000000000.0)
            p = _softmax(scores, axis=-1)
            o = torch.einsum('bhqk,bhke->bhqe', p, v)
            o = torch.einsum('bhte,hed->btd', o, Wo)
            mem = o[:, :M, :].clone()
            outs.append(o[:, M:, :])
        return torch.concatenate(outs, axis=1)

    def _B_ref(x, w1, b1, w2, b2):
        h = torch.einsum('bsd,df->bsf', x, w1) + b1
        zero = torch.zeros_like(h)
        r = torch.where(h > zero, h, zero)
        h = r * r
        out = torch.einsum('bsf,fd->bsd', h, w2) + b2
        return out
    x = A_x
    g = _sigmoid((x * gate_w).sum(-1, keepdims=True))
    a = _A_ref(x, A_mem0, A_Wq, A_Wk, A_Wv, A_Wo, A_seg_len)
    b = _B_ref(x, B_w1, B_b1, B_w2, B_b2)
    return g * a + (1 - g) * b
```

```python
import re

REG_RE = re.compile(r'^(-?\|?)([vas])(\d+)\|?$')
RNG_RE = re.compile(r'^(-?\|?)([vas])\[(\d+):(\d+)\]\|?$')

def regs_of(tok):
    tok = tok.strip()
    tok = re.sub(r'^(neg|abs)\((.*)\)$', r'\2', tok)
    m = REG_RE.match(tok)
    if m: return [(m.group(2), int(m.group(3)))]
    m = RNG_RE.match(tok)
    if m: return [(m.group(2), i) for i in range(int(m.group(3)), int(m.group(4)) + 1)]
    if tok == 'vcc': return [('s', 106), ('s', 107)]
    if tok == 'exec': return [('s', 126), ('s', 127)]
    if tok == 'm0': return [('s', 124)]
    return []

TRANS = ('v_exp_f32', 'v_log_f32', 'v_rcp_f32', 'v_rsq_f32', 'v_sqrt_f32', 'v_sin_f32', 'v_cos_f32')

def mfma_passes(op):
    if '32x32x16' in op or '32x32x8' in op or '32x32x32' in op: return 8
    if '16x16x32' in op or '16x16x16' in op or '16x16x64' in op: return 4
    raise ValueError(op)

class Ins:
    __slots__ = ('text', 'op', 'cls', 'defs', 'uses', 'srcc', 'ab', 'passes', 'dpp', 'wide_store', 'states')

def parse(text):
    t = text.split(';')[0].strip()
    I = Ins(); I.text = text; I.defs = []; I.uses = []; I.srcc = []; I.ab = []; I.passes = 0; I.dpp = False
    I.wide_store = []; I.states = 1
    if not t or t.endswith(':') or t.startswith('.'):
        I.op = ''; I.cls = 'label' if t.endswith(':') else 'none'; I.states = 0
        return I
    parts = t.split(None, 1)
    op = parts[0]; I.op = op
    rest = parts[1] if len(parts) > 1 else ''
    ops = [x.strip() for x in rest.split(',')]
    toks = []
    for o in ops:
        toks.append(o.split()[0] if o.split() else '')
    mods = rest
    if op == 's_nop':
        I.cls = 'salu'; I.states = int(toks[0], 0) + 1; return I
    if op.startswith('v_mfma') or op.startswith('v_smfmac'):
        I.cls = 'mfma'; I.passes = mfma_passes(op)
        I.defs = regs_of(toks[0]); I.ab = regs_of(toks[1]) + regs_of(toks[2])
        if op.startswith('v_smfmac'):
            I.srcc = regs_of(toks[0]); I.ab += regs_of(toks[3])
        else:
            I.srcc = regs_of(toks[3])
        I.uses = I.ab + I.srcc
        return I
    if op.startswith('v_'):
        I.cls = 'trans' if op.replace('_e32', '').replace('_e64', '') in TRANS else 'valu'
        I.dpp = ('_dpp' in op) or ('row_' in mods) or ('quad_perm' in mods)
        if op.startswith('v_cmpx'):
            I.defs = regs_of(toks[0]) + regs_of('exec'); I.uses = sum((regs_of(x) for x in toks[1:]), [])
        elif op.startswith('v_cmp'):
            I.defs = regs_of(toks[0]); I.uses = sum((regs_of(x) for x in toks[1:]), [])
        elif op.startswith('v_permlane') and 'swap' in op:
            I.defs = regs_of(toks[0]) + regs_of(toks[1]); I.uses = list(I.defs)
        elif op.startswith('v_add_co') or op.startswith('v_sub_co') or op.startswith('v_addc_co'):
            I.defs = regs_of(toks[0]) + regs_of(toks[1]); I.uses = sum((regs_of(x) for x in toks[2:]), [])
        else:
            I.defs = regs_of(toks[0]); I.uses = sum((regs_of(x) for x in toks[1:]), [])
            if op.startswith('v_fmac') or op.startswith('v_dot2c') or I.dpp or op.startswith('v_writelane'):
                I.uses += regs_of(toks[0])
        return I
    if op.startswith('ds_'):
        I.cls = 'ds'
        if op.startswith('ds_read') or op.startswith('ds_bpermute') or op.startswith('ds_swizzle') or op.startswith('ds_permute'):
            I.defs = regs_of(toks[0]); I.uses = sum((regs_of(x) for x in toks[1:]), [])
        else:
            I.uses = sum((regs_of(x) for x in toks), [])
        return I
    if op.startswith('buffer_') or op.startswith('global_'):
        I.cls = 'vmem'
        lds = bool(re.search(r'\blds\b', mods)) or '_lds_' in op
        if 'load' in op and not lds:
            I.defs = regs_of(toks[0]); I.uses = sum((regs_of(x) for x in toks[1:]), [])
        elif lds:
            I.uses = sum((regs_of(x) for x in toks), []) + [('s', 124)]
            I.cls = 'vmem_lds'
        else:
            I.uses = sum((regs_of(x) for x in toks), [])
            if 'atomic' in op and 'sc0' in mods:
                I.defs = regs_of(toks[0])
            if op.endswith('x4') or op.endswith('x3'):
                data = toks[0] if op.startswith('buffer_') else toks[1]
                I.wide_store = regs_of(data)
        return I
    if op.startswith('s_'):
        I.cls = 'salu'
        if op.startswith('s_cmp') or op.startswith('s_cbranch') or op.startswith('s_branch') or op in ('s_waitcnt', 's_barrier', 's_endpgm', 's_setprio', 's_sleep'):
            I.uses = sum((regs_of(x) for x in toks), [])
        else:
            I.defs = regs_of(toks[0]); I.uses = sum((regs_of(x) for x in toks[1:]), [])
            if 'saveexec' in op: I.defs += regs_of('exec')
        return I
    raise ValueError('cannot parse: ' + text)

XDL_D_USE = {4: 8, 8: 12}
XDL_C_OVL = {4: 6, 8: 10}
XDL_C_WAR = {4: 3, 8: 7}

def need_states(p, c):
    n = 0
    pd = set(p.defs); cu = set(c.uses); cd = set(c.defs)
    pvalu = p.cls in ('valu', 'trans')
    cvalu = c.cls in ('valu', 'trans')
    vd = {r for r in pd if r[0] in 'va'}
    sd = {r for r in pd if r[0] == 's'}
    if pvalu:
        if c.cls == 'mfma' and vd & cu: n = max(n, 2)
        if cvalu and c.op.startswith('v_permlane') and vd & cu: n = max(n, 2)
        if cvalu and c.dpp and vd & cu: n = max(n, 2)
        if c.op.startswith('v_readlane') or c.op.startswith('v_readfirstlane'):
            if vd & cu: n = max(n, 1)
        if p.cls == 'trans' and c.cls == 'valu' and vd & cu: n = max(n, 1)
        if sd:
            if cvalu and sd & cu: n = max(n, 4 if (c.op.startswith('v_readlane') or c.op.startswith('v_writelane')) else 2)
            if c.cls in ('vmem', 'vmem_lds') and sd & cu: n = max(n, 5)
            if ('s', 126) in sd:
                if c.cls == 'mfma': n = max(n, 4)
                if cvalu and c.dpp: n = max(n, 5)
                if c.op.startswith('v_readlane') or c.op.startswith('v_readfirstlane') or c.op.startswith('v_permlane') or c.op.startswith('v_writelane'): n = max(n, 4)
            if c.op in ('s_cbranch_vccz', 's_cbranch_vccnz') and ('s', 106) in sd: n = max(n, 0)
    if p.cls == 'mfma':
        if c.cls == 'mfma':
            if pd & set(c.ab): n = max(n, XDL_D_USE[p.passes])
            ov = pd & set(c.srcc)
            if ov:
                same = (sorted(p.defs) == sorted(c.srcc)) and p.op == c.op
                if not same: n = max(n, XDL_C_OVL[p.passes])
            if (pd & cd) and not ov: n = max(n, XDL_C_OVL[p.passes])
        elif c.cls in ('valu', 'trans', 'ds', 'vmem', 'vmem_lds'):
            if pd & (cu | cd): n = max(n, XDL_D_USE[p.passes])
            if cvalu and set(p.srcc) & cd: n = max(n, XDL_C_WAR[p.passes])
    if p.wide_store and set(p.wide_store) & cd:
        n = max(n, 2 if cvalu else 1)
    if p.cls == 'salu' and ('s', 124) in sd and c.cls == 'vmem_lds': n = max(n, 1)
    return n

class Asm:
    def __init__(self):
        self.out = []
        self.dsq = []
        self.vmq = []
        self.nops = 0
    def raw(self, text):
        for line in text.split('\n'):
            I = Ins(); I.text = line; I.op = ''; I.cls = 'none'; I.defs = []; I.uses = []; I.srcc = []; I.ab = []
            I.passes = 0; I.dpp = False; I.wide_store = []; I.states = 0
            self.out.append(I)
    def __call__(self, text, tag=None):
        for line in text.split('\n'):
            if not line.strip(): continue
            I = parse(line)
            if I.cls not in ('label', 'none'):
                dist = 0; need = 0
                for p in reversed(self.out):
                    if p.cls in ('none',): continue
                    if p.cls == 'label': continue
                    ns = need_states(p, I)
                    if ns > dist: need = max(need, ns - dist)
                    dist += p.states
                    if dist >= 20: break
                while need > 0:
                    k = min(need, 16)
                    self.out.append(parse(f'    s_nop {k-1}')); self.nops += k
                    need -= k
                if I.cls == 'ds': self.dsq.append(tag)
                if I.cls in ('vmem', 'vmem_lds') and not I.op.startswith('buffer_inv') and not I.op.startswith('buffer_wbl2'): self.vmq.append(tag)
                if not line.startswith(' '): I.text = '    ' + line
            self.out.append(I)
    def label(self, name):
        self(name + ':')
    def flush_hazards(self, n=12):
        self(f's_nop {n-1}')
    def wait_ds(self, tag):
        idx = [i for i, t in enumerate(self.dsq) if t == tag]
        if not idx: return
        n = len(self.dsq) - 1 - idx[-1]
        self(f's_waitcnt lgkmcnt({min(n,15)})')
        self.dsq = self.dsq[len(self.dsq) - min(n, 15):] if n > 0 else []
    def wait_vm(self, tag):
        idx = [i for i, t in enumerate(self.vmq) if t == tag]
        if not idx: return
        n = len(self.vmq) - 1 - idx[-1]
        assert n <= 63
        self(f's_waitcnt vmcnt({n})')
        self.vmq = self.vmq[len(self.vmq) - n:] if n > 0 else []
    def wait_all(self, ds=True, vm=True):
        s = []
        if vm: s.append('vmcnt(0)'); self.vmq = []
        if ds: s.append('lgkmcnt(0)'); self.dsq = []
        self('s_waitcnt ' + ' '.join(s))
    def text(self):
        return '\n'.join(i.text for i in self.out) + '\n'

def vr(base, n=1, f='v'):
    return f'{f}{base}' if n == 1 else f'{f}[{base}:{base+n-1}]'
```

```python
import struct, math
from asmlib import Asm, vr

OFF_PART = 0x100000
OFF_MEM  = 0x200000
OFF_KMVM = 0x400000
OFF_KX   = 0x1000000
OFF_VX   = 0x2000000
OFF_QX   = 0x3000000
OFF_TIM  = 0x300000
WS_BYTES = 0x10000000
L_MEM = 0
L_KX = 8192
L_VX = 16384
L_D = 24576
L_K = 26624
L_O = 30720
L_W = 32768
DBG_RANK0 = 0
DBG_READY = 4
SPIN_MAX = 200000

def fbits(x): return struct.unpack('<I', struct.pack('<f', x))[0]

sWS, sDBG = 4, 8
sCk = 12
sWave, sH, sStep, sT0, sT1, sSpin = 16, 17, 18, 19, 20, 21
sPartSt0, sPartSt1, sRed, sRst, sGat, sPub, sPubRst = 22, 23, 24, 26, 27, 28, 29
sKXd, sVXd, sPf, sKM, sC = 30, 31, 32, 33, 34
sA = [36, 37, 38, 39]
sGatB, sRedB, sPubB = 40, 41, 43
sPf2, sPfInc, sPfEx = 25, 35, 100
sOnes = 44
sRt, sRt0 = 46, 48
sVal = 50
sWQ, sWK, sWV, sWO, sM0 = 52, 56, 60, 64, 68
sMask = [72, 74, 76, 78]
sMKX, sMVX, sHb, sWb, sFail = 81, 82, 83, 84, 85
NST = 10
sSt = 52
sAcc = 86
sPg, sPr, sThr, sLast = 96, 97, 98, 99
THR = 30.0
RDEPTH = 3
RED_DELAY = 0
G_DELAY = 0
G_GAP = 4
DIAG = 0
NO_PF = 0
NO_KM = 0
KVINC = 262144
KMINC = 131072
PFMODE = 0
LIGHT = 0
NCU = 32
NOHOP = 0
DROP = ()
KVF = ''
KMF = ''
vWl, vXl, vIdx, vPst, vQr, vMw, vQw, vPub, vOw, vOr, vPf, vSel = range(12)
vGat = vRed = vXl
vT = [12, 13, 14, 15]
MEM = 16; WBA = 48; WBB = 56; QT = 64; KXB = 80; AQ = 96; AK = 104; AV = 112; KV = 120; PM = 124

def build_frag_map():
    lds_chunks = [('v', 0), ('q', 3), ('k', 3), ('o', 0)]
    allc = [(m, a) for m in 'qkvo' for a in range(4)]
    regc = [c for c in allc if c not in lds_chunks]
    loc = {}
    slot = 0
    def frs(c):
        m, a = c
        if m == 'o': return [(m, 2*a + tau, tt, tau, tt) for tt in range(2) for tau in range(2)]
        return [(m, tau, 2*a + tt, tau, tt) for tt in range(2) for tau in range(2)]
    for c in regc:
        for (m, tile, t, tau, tt) in frs(c):
            if slot < 32: loc[(m, tile, t)] = ('a', slot * 8)
            else: loc[(m, tile, t)] = ('v', 128 + (slot - 32) * 8)
            slot += 1
    assert slot == 48
    li = 0
    for c in lds_chunks:
        for (m, tile, t, tau, tt) in frs(c):
            loc[(m, tile, t)] = ('l', li); li += 1
    return regc + lds_chunks, loc, frs

def gen_chain(A, timing=False, kv_flags='', nsteps=64):
    chunks, loc, frs = build_frag_map()
    W = f's[{sWS}:{sWS+3}]'
    def stamp(i, force=False):
        if LIGHT: return
        if DIAG and not force:
            if 1 <= i <= 7: return
            if i == 8: i = 1
        if timing: A(f's_memtime s[{sSt+2*i}:{sSt+2*i+1}]')
    def E(x):
        if isinstance(x, tuple):
            tg = x[1][0] if isinstance(x[1], tuple) else x[1]
            if tg in DROP: return
            A(x[0], x[1])
        elif callable(x): x()
        else: A(x)
    def EL(l):
        for x in l: E(x)
    A(f'''
v_and_b32 v127, 63, v0                       ; lane
v_and_b32 v126, 15, v127                     ; j / i / n
v_lshrrev_b32 v125, 4, v127                  ; g
v_lshlrev_b32 v{vXl}, 4, v127                ; lane*16
s_lshl_b32 s{sWb}, s{sWave}, 15
s_add_u32 s{sWb}, s{sWb}, {L_W}
v_add_u32 v{vWl}, s{sWb}, v{vXl}
s_lshl_b32 s{sT0}, s{sWave}, 11
v_add_u32 v{vMw}, s{sT0}, v{vXl}
s_lshl_b32 s{sHb}, s{sH}, 13                 ; h*8192
s_add_u32 s{sGatB}, s{sT0}, {OFF_MEM}
s_add_u32 s{sRedB}, s{sHb}, s{sT0}
s_add_u32 s{sRedB}, s{sRedB}, {OFF_PART}
s_lshl_b32 s{sT0}, s{sH}, 6
s_add_u32 s{sPubB}, s{sT0}, s{sGatB}
v_and_b32 v121, 1, v127                      ; bit0
v_bfe_u32 v122, v127, 1, 1                   ; bit1
v_bfe_u32 v123, v127, 2, 1                   ; bit2
v_bfe_u32 v124, v127, 3, 1                   ; bit3
v_and_b32 v120, 3, v127
v_bfe_u32 v116, v127, 4, 1
v_bfe_u32 v115, v127, 5, 1
v_lshlrev_b32 v{vPub}, 5, v122
v_lshl_add_u32 v{vPub}, v115, 4, v{vPub}
v_lshl_add_u32 v{vPub}, v121, 3, v{vPub}
v_lshl_add_u32 v{vPub}, v116, 2, v{vPub}
v_mov_b32 v64, -1
v_mov_b32 v65, -1
v_mov_b32 v66, -1
v_mov_b32 v67, -1
''')
    for sl in range(4):
        if sl < 2:
            A(f's_add_u32 s{sT0}, s{sRedB}, {sl << 18}')
            A(f'buffer_store_dwordx4 v[64:67], v{vXl}, {W}, s{sT0} offen', 'rst')
            A(f'buffer_store_dwordx4 v[64:67], v{vXl}, {W}, s{sT0} offen offset:1024', 'rst')
        A(f's_add_u32 s{sT0}, s{sPubB}, {sl << 13}')
        A(f'buffer_store_dword v64, v{vPub}, {W}, s{sT0} offen', 'rst')
    A(f'''
v_mov_b32 v119, 0x4444
v_mov_b32 v118, 0xeeee
v_cmp_eq_u32 s[{sVal}:{sVal+1}], 1, v122
v_cndmask_b32 v{vIdx}, v119, v118, s[{sVal}:{sVal+1}]
v_lshrrev_b32 v119, 2, v126
; vPst = (8w + 4jh + g)*8192 + h*64 + (j%8)*8
v_lshl_add_u32 v118, v124, 2, v125
v_lshlrev_b32 v118, 13, v118
v_and_b32 v117, 7, v127
v_lshl_add_u32 v118, v117, 3, v118
s_lshl_b32 s{sT0}, s{sWave}, 16
s_lshl_b32 s{sT1}, s{sH}, 6
s_add_u32 s{sT0}, s{sT0}, s{sT1}
v_add_u32 v{vPst}, s{sT0}, v118
v_lshrrev_b32 v{vQr}, 1, v{vXl}
v_lshlrev_b32 v{vPf}, 3, v{vXl}
v_lshl_add_u32 v118, v119, 1, v121
v_lshlrev_b32 v118, 4, v118
v_lshl_add_u32 v117, v125, 1, v122
v_lshl_add_u32 v117, v117, 7, v118
v_add_u32 v{vOr}, {L_O}, v117
v_lshl_add_u32 v117, v125, 7, v118
s_lshl_b32 s{sT0}, s{sWave}, 9
v_add_u32 v117, s{sT0}, v117
v_mov_b32 v116, {L_D}
v_mov_b32 v115, {L_O}
v_cndmask_b32 v116, v116, v115, s[{sVal}:{sVal+1}]
v_add_u32 v{vOw}, v116, v117
; vQw = L_K + (32w + j)*32 + g*8
v_lshlrev_b32 v117, 5, v126
v_lshl_add_u32 v117, v125, 3, v117
s_lshl_b32 s{sT0}, s{sWave}, 10
s_add_u32 s{sT0}, s{sT0}, {L_K}
v_add_u32 v{vQw}, s{sT0}, v117
v_mov_b32 v117, 0x3f80
v_mov_b32 v116, 0x3f800000
v_cmp_eq_u32 vcc, 1, v124
v_cndmask_b32 v{vSel}, v117, v116, vcc
v_lshl_add_u32 v117, v123, 1, v120
v_lshl_add_u32 v117, v122, 3, v117
s_mov_b32 s{sThr}, {fbits(THR):#x}
s_mov_b32 s{sC}, {fbits((128 ** -0.5) * math.log2(math.e)):#x}
s_mov_b32 s{sOnes}, 0x3f803f80
s_mov_b32 s{sOnes+1}, 0x3f803f80
''')
    for k in range(4):
        A(f'v_cmp_eq_u32 s[{sMask[k]}:{sMask[k]+1}], {k}, v117')
    A(f'''
v_bfe_u32 v116, v127, 4, 1                   ; gB%2
v_bfe_u32 v115, v127, 5, 1                   ; gB/2
v_lshlrev_b32 v113, 1, v116
v_xor_b32 v114, v120, v113                   ; piece
; qkv: d_lane = 16b + 8(gB/2) + 4half + 2(gB%2)      (b = bit2, half = bit3)
v_lshlrev_b32 v112, 4, v123
v_lshl_add_u32 v112, v115, 3, v112
v_lshl_add_u32 v112, v124, 2, v112
v_lshl_add_u32 v112, v116, 1, v112
v_lshlrev_b32 v112, 13, v112
v_lshl_add_u32 v112, v114, 4, v112
s_lshl_b32 s{sT0}, s{sH}, 8
s_lshl_b32 s{sT1}, s{sWave}, 6
s_add_u32 s{sT0}, s{sT0}, s{sT1}
v_add_u32 v112, s{sT0}, v112
; o: e_lane = 16(gB%2) + 8(gB/2) + 4half + b
v_lshlrev_b32 v111, 4, v116
v_lshl_add_u32 v111, v115, 3, v111
v_lshl_add_u32 v111, v124, 2, v111
v_add_u32 v111, v111, v123
v_lshlrev_b32 v111, 10, v111
v_lshl_add_u32 v111, v114, 4, v111
s_lshl_b32 s{sT0}, s{sH}, 17
s_lshl_b32 s{sT1}, s{sWave}, 8
s_add_u32 s{sT0}, s{sT0}, s{sT1}
v_add_u32 v111, s{sT0}, v111
; tr-read lane address: gB*256 + r'*64 + ((tau^(gB%2))*32) + c*8
v_lshrrev_b32 v110, 2, v127
v_lshlrev_b32 v110, 6, v110
v_lshl_add_u32 v110, v120, 3, v110
v_lshl_add_u32 v110, v116, 5, v110           ; tau=0
v_xor_b32 v109, 32, v110                     ; tau=1
s_lshl_b32 s{sMKX}, s{sWave}, 13
v_add_u32 v108, s{sMKX}, v110
v_add_u32 v107, s{sMKX}, v109
v_add_u32 v110, s{sWb}, v110
v_add_u32 v109, s{sWb}, v109
''')
    for a in range(4):
        A(f's_xor_b32 s{sA[a]}, s{sWave}, {a}')
        A(f's_lshl_b32 s{sA[a]}, s{sA[a]}, 18')
    srd = {'q': sWQ, 'k': sWK, 'v': sWV, 'o': sWO}
    def slot_of(i): return (i + 3) % 5
    def issue_chunk(i):
        m, a = chunks[i]; sl = slot_of(i)
        for j in range(8):
            tt, hi, qq = j >> 2, (j >> 1) & 1, j & 1
            if sl < 4: A(f's_add_u32 m0, s{sWb}, {sl*8192 + j*1024}')
            else: A(f's_add_u32 m0, s{sMKX}, {j*1024}')
            if m == 'o':
                A(f's_mov_b32 s{sT0}, {(64*tt + 32*hi + 2*qq)*1024 + a*64}')
                A(f'buffer_load_dwordx4 v111, s[{srd[m]}:{srd[m]+3}], s{sT0} offen lds', ('ch', i))
            else:
                A(f's_add_u32 s{sT0}, s{sA[a]}, {(256*tt + 128*hi + qq)*8192}')
                A(f'buffer_load_dwordx4 v112, s[{srd[m]}:{srd[m]+3}], s{sT0} offen lds', ('ch', i))
    for i in range(5): issue_chunk(i)
    for i in range(16):
        A.wait_vm(('ch', i))
        if i == 0:
            A(f'v_mov_b32 v106, {DBG_READY*4}\nv_mov_b32 v105, 1\ns_mov_b64 exec, 1')
            A(f'buffer_atomic_add v105, v106, s[{sDBG}:{sDBG+3}], 0 offen', 'sig')
            A('s_mov_b64 exec, -1')
        sl = slot_of(i)
        fl = frs(chunks[i])
        for n, (m, tile, t, tau, tt) in enumerate(fl):
            kind, base = loc[(m, tile, t)]
            if kind == 'l': f, b0 = 'v', 16 + n * 8
            else: f, b0 = kind, base
            for rho in range(4):
                j = tt * 4 + rho
                if sl < 4: addr, off = (110 if tau == 0 else 109), sl * 8192 + j * 1024
                else: addr, off = (108 if tau == 0 else 107), j * 1024
                A(f'ds_read_b64_tr_b16 {f}[{b0+2*rho}:{b0+2*rho+1}], v{addr} offset:{off}', 'tr')
        A.wait_all(vm=False)
        if i + 5 < 16: issue_chunk(i + 5)
        if i >= 12:
            for n, (m, tile, t, tau, tt) in enumerate(fl):
                li = loc[(m, tile, t)][1]
                assert li // 4 == sl
                for hh in range(2):
                    A(f'ds_write_b128 v{vWl}, v[{16+n*8+4*hh}:{16+n*8+4*hh+3}] offset:{li*2048 + hh*1024}', 'w')
            A.wait_all(vm=False)
    A('s_barrier')
    A(f'''
s_lshl_b32 s{sT0}, s{sWave}, 11
s_add_u32 s{sMKX}, s{sT0}, {L_KX}
s_add_u32 s{sMVX}, s{sT0}, {L_VX}
s_add_u32 s{sT0}, s{sT0}, s{sHb}
s_add_u32 s{sKXd}, s{sT0}, {OFF_KX}
s_add_u32 s{sVXd}, s{sT0}, {OFF_VX}
s_and_b32 s{sT0}, s{sWave}, 1
s_lshl_b32 s{sT0}, s{sT0}, 12
s_add_u32 s{sT0}, s{sT0}, s{sHb}
s_lshr_b32 s{sT1}, s{sWave}, 1
s_lshl_b32 s{sT1}, s{sT1}, 24
s_add_u32 s{sT0}, s{sT0}, s{sT1}
s_add_u32 s{sPf}, s{sT0}, {OFF_KX + 2*262144}
s_lshl_b32 s{sT0}, s{sH}, 12
s_lshl_b32 s{sT1}, s{sWave}, 10
s_add_u32 s{sT0}, s{sT0}, s{sT1}
s_add_u32 s{sKM}, s{sT0}, {OFF_KMVM}
s_mov_b32 s{sFail}, 0
s_mov_b32 s{sPfInc}, {KVINC}
s_mov_b32 s{sPfEx}, -1
s_mov_b32 s{sPfEx+1}, 0
''')
    if PFMODE == 2:
        A(f'''
s_add_u32 s{sPf}, s{sHb}, {OFF_KX + 2*262144}
s_add_u32 s{sPf2}, s{sHb}, {OFF_VX + 2*262144}
s_mov_b32 s{sPfEx+1}, -1
s_cmp_eq_u32 s{sWave}, 0
s_cbranch_scc1 L_ch_pfw0
s_mov_b32 s{sPf}, s{sRedB}
s_mov_b32 s{sPf2}, s{sRedB}
s_mov_b32 s{sPfInc}, 0
s_mov_b32 s{sPfEx}, 1
s_mov_b32 s{sPfEx+1}, 0
L_ch_pfw0:
''')
    dkx = [(f'buffer_load_dwordx4 v{vXl}, {W}, s{sKXd} offen {kv_flags} {KVF} lds', 'dkx0'),
           (f'buffer_load_dwordx4 v{vXl}, {W}, s{sKXd} offen offset:1024 {kv_flags} {KVF} lds', 'dkx'), f's_add_u32 s{sKXd}, s{sKXd}, {KVINC}']
    dvx = [(f'buffer_load_dwordx4 v{vXl}, {W}, s{sVXd} offen {kv_flags} {KVF} lds', 'dvx'),
           (f'buffer_load_dwordx4 v{vXl}, {W}, s{sVXd} offen offset:1024 {kv_flags} {KVF} lds', 'dvx'), f's_add_u32 s{sVXd}, s{sVXd}, {KVINC}']
    A(f's_mov_b32 m0, s{sMKX}'); EL(dkx)
    A(f's_mov_b32 m0, s{sMVX}'); EL(dvx)
    A(f'''
v_lshlrev_b32 v100, 10, v115
v_lshl_add_u32 v100, v120, 2, v100
v_lshl_add_u32 v100, v116, 1, v100
s_and_b32 s{sT0}, s{sH}, 3
s_lshl_b32 s{sT0}, s{sT0}, 11
s_lshr_b32 s{sT1}, s{sH}, 3
s_lshl_b32 s{sT1}, s{sT1}, 8
s_add_u32 s{sT0}, s{sT0}, s{sT1}
s_and_b32 s{sT1}, s{sH}, 4
s_lshl_b32 s{sT1}, s{sT1}, 2
s_add_u32 s{sT0}, s{sT0}, s{sT1}
s_lshl_b32 s{sT1}, s{sWave}, 6
s_add_u32 s{sT0}, s{sT0}, s{sT1}
''')
    A(f'buffer_load_ushort v101, v100, s[{sM0}:{sM0+3}], s{sT0} offen', 'm0')
    A(f'buffer_load_ushort v102, v100, s[{sM0}:{sM0+3}], s{sT0} offen offset:32', 'm0')
    A(f'v_mov_b32 v106, {DBG_READY*4}')
    A(f's_mov_b32 s{sSpin}, 0')
    A.label('L_ch_rdy')
    A(f'buffer_load_dword v105, v106, s[{sDBG}:{sDBG+3}], 0 offen sc1', 'rdy')
    A(f's_add_u32 s{sSpin}, s{sSpin}, 1')
    A(f's_cmp_gt_u32 s{sSpin}, {SPIN_MAX}')
    A('s_cbranch_scc1 L_ch_fail')
    A.wait_all(ds=False)
    A('v_cmp_gt_u32 vcc, 128, v105')
    if not NOHOP: A('s_cbranch_vccnz L_ch_rdy')
    A('v_lshl_or_b32 v101, v102, 16, v101')
    A(f'buffer_store_dword v101, v{vPub}, {W}, s{sPubB} offen')
    A(f'v_mov_b32 v{PM+1}, 0\nv_mov_b32 v{PM+2}, 0\ns_mov_b32 s{sStep}, 0')

    def wop(m, tile, t, buf=None):
        kind, base = loc[(m, tile, t)]
        if kind == 'l':
            assert buf is not None, (m, tile, t)
            return f'v[{buf}:{buf+7}]'
        return f'{kind}[{base}:{base+7}]'
    def ldw_i(m, tile, t, buf):
        kind, li = loc[(m, tile, t)]; assert kind == 'l'
        return [(f'ds_read_b128 v[{buf}:{buf+3}], v{vWl} offset:{li*2048}', ('w', buf)),
                (f'ds_read_b128 v[{buf+4}:{buf+7}], v{vWl} offset:{li*2048+1024}', ('w', buf))]
    acc = {'q': AQ, 'k': AK, 'v': AV}
    def sm(m, tile, t, buf=None):
        if buf is not None: A.wait_ds(('w', buf))
        if t >= 2: A.wait_ds(('mem', t))
        d = acc[m] + 4 * tile
        A(f'v_smfmac_f32_16x16x64_bf16 v[{d}:{d+3}], v[{MEM+4*t}:{MEM+4*t+3}], {wop(m, tile, t, buf)}, v{vIdx}')
    def memrd(t):
        return (f'ds_read_b128 v[{MEM+4*t}:{MEM+4*t+3}], v{vT[t//2-1]} offset:{L_MEM + (t&1)*1024}', ('mem', t))
    def kxrd2(kt, ks):
        b = (KXB if kt == 0 else WBA) + 4 * ks
        return (f'ds_read_b128 v[{b}:{b+3}], v{vXl} offset:{L_KX + (2*ks+kt)*1024}', ('kx', kt, ks))
    def pre_w():
        EL(ldw_i('v', 0, 0, WBA) + ldw_i('v', 1, 0, WBB) + ldw_i('q', 0, 6, QT) + ldw_i('q', 1, 6, QT + 8))
        EL([kxrd2(0, ks) for ks in range(4)])
    def pre_zero(lo, hi):
        for r in range(lo, hi, 2): A(f'v_mov_b64 v[{r}:{r+1}], 0')
    def pre_addr():
        for a in (1, 2, 3): A(f'v_xor_b32 v{vT[a-1]}, {a << 11}, v{vMw}')
    sc = [f's_and_b32 s{sT0}, s{sStep}, 1', f's_lshl_b32 s{sT1}, s{sT0}, 18',
          f's_add_u32 s{sPartSt0}, s{sT1}, {OFF_PART}', f's_add_u32 s{sPartSt1}, s{sT1}, {OFF_PART + 4096}',
          f's_add_u32 s{sRed}, s{sT1}, s{sRedB}',
          f's_xor_b32 s{sT1}, s{sT1}, {1 << 18}', f's_add_u32 s{sRst}, s{sT1}, s{sRedB}',
          f's_add_u32 s{sT0}, s{sStep}, 3', f's_and_b32 s{sT0}, s{sT0}, 3',
          f's_lshl_b32 s{sPubRst}, s{sT0}, 13', f's_add_u32 s{sPubRst}, s{sPubRst}, s{sPubB}',
          f's_add_u32 s{sT0}, s{sStep}, 1', f's_and_b32 s{sT0}, s{sT0}, 3', f's_lshl_b32 s{sT0}, s{sT0}, 13',
          f's_add_u32 s{sPub}, s{sT0}, s{sPubB}', f's_add_u32 s{sGat}, s{sT0}, s{sGatB}']
    A(f's_mov_b32 s{sGat}, s{sGatB}')
    A.wait_all(ds=False)
    A('s_barrier')
    pre_w(); pre_zero(AQ, AV + 8); pre_addr()
    if timing:
        for i in range(NST): A(f's_mov_b32 s{sAcc+i}, 0')
        A(f's_memtime s[{sSt}:{sSt+1}]'); A('s_waitcnt lgkmcnt(0)')
        for i in range(1, NST): A(f's_mov_b32 s{sSt+2*i}, s{sSt}')
        A(f's_mov_b32 s{sPg}, 0'); A(f's_mov_b32 s{sPr}, 0')
        A(f's_memrealtime s[{sRt}:{sRt+1}]'); A('s_waitcnt lgkmcnt(0)')
    A.label('L_ch_step')
    A.dsq = []; A.vmq = []
    def gload():
        A(f'buffer_load_dwordx4 v[{MEM}:{MEM+3}], v{vGat}, {W}, s{sGat} offen sc1', 'g')
        A(f'buffer_load_dwordx4 v[{MEM+4}:{MEM+7}], v{vGat}, {W}, s{sGat} offen offset:1024 sc1', 'g')
    for _ in range(G_DELAY): A('s_nop 3')
    gload()
    A(f'v_mov_b64 v[{AV}:{AV+1}], 0'); A(f'v_mov_b64 v[{AV+2}:{AV+3}], 0')
    A(f's_mov_b32 s{sSpin}, 0')
    A('s_waitcnt lgkmcnt(0)')
    if timing and not LIGHT:
        for i in range(NST - 1):
            A(f's_sub_u32 s{sT0}, s{sSt+2*(i+1)}, s{sSt+2*i}'); A(f's_add_u32 s{sAcc+i}, s{sAcc+i}, s{sT0}')
        A(f's_mov_b32 s{sLast}, s{sSt+2*(NST-1)}')
    else:
        for _ in range(G_GAP): A('s_nop 3')
    A.label('L_ch_g')
    gload()
    A(f's_add_u32 s{sSpin}, s{sSpin}, 1')
    A(f's_cmp_gt_u32 s{sSpin}, {SPIN_MAX}')
    A('s_cbranch_scc1 L_ch_fail')
    A('s_waitcnt vmcnt(2)')
    A(f'v_cmp_u_f32 vcc, v{MEM}, v{MEM+4}')
    A('s_cbranch_vccnz L_ch_g' if not NOHOP else 's_nop 0')
    A.vmq = ['g', 'g']
    A(f'ds_write_b128 v{vMw}, v[{MEM}:{MEM+3}] offset:{L_MEM}', 'mw')
    A(f'ds_write_b128 v{vMw}, v[{MEM+4}:{MEM+7}] offset:{L_MEM+1024}', 'mw')
    stamp(0)
    q7 = ldw_i('q', 0, 7, WBA) + ldw_i('q', 1, 7, WBB)
    k6 = ldw_i('k', 0, 6, QT) + ldw_i('k', 1, 6, QT + 8)
    k7 = ldw_i('k', 0, 7, WBA) + ldw_i('k', 1, 7, WBB)
    v1 = ldw_i('v', 0, 1, QT) + ldw_i('v', 1, 1, QT + 8)
    def b1():
        A.wait_ds('mw')
        A(f's_or_b64 s[{sCk}:{sCk+1}], s[{sCk}:{sCk+1}], s[{sCk+2}:{sCk+3}]')
        A(f's_or_b64 s[{sCk}:{sCk+1}], s[{sCk}:{sCk+1}], vcc')
        A('s_cbranch_scc1 L_ch_torn' if not NOHOP else 's_nop 0')
        if timing:
            A(f's_add_u32 s{sPg}, s{sPg}, s{sSpin}')
            if not LIGHT:
                A(f's_sub_u32 s{sT0}, s{sSt}, s{sLast}'); A(f's_add_u32 s{sAcc+NST-1}, s{sAcc+NST-1}, s{sT0}')
        A('s_barrier')
    def post(a, dst, scale=False):
        r = [f'v_add_f32 v{a}, v{a}, v{a+2}', f'v_add_f32 v{a+1}, v{a+1}, v{a+3}']
        if scale: r += [f'v_mul_f32 v{a}, s{sC}, v{a}', f'v_mul_f32 v{a+1}, s{sC}, v{a+1}']
        return r + [f'v_cvt_pk_bf16_f32 v{dst}, v{a}, v{a+1}']
    qp = post(AQ, AQ, True) + post(AQ + 4, AQ + 4, True)
    kp0 = post(AK, KV); kp1 = post(AK + 4, KV + 1)
    frd = [(f'ds_read_b64_tr_b16 v[{QT+4*ks+2*hi}:{QT+4*ks+2*hi+1}], v{vQr} offset:{L_K + ks*1024 + hi*512}', ('f', ks)) for ks in range(4) for hi in range(2)]
    rs = [(f'buffer_store_dwordx4 v[{KV}:{KV+3}], v{vXl}, {W}, s{sRst} offen', 'rst'),
          (f'buffer_store_dwordx4 v[{KV}:{KV+3}], v{vXl}, {W}, s{sRst} offen offset:1024', 'rst'),
          (f'buffer_store_dword v{KV}, v{vPub}, {W}, s{sPubRst} offen', 'rst')]
    pfl = [(f'buffer_load_dword v{vPf}, {W}, s{sPf} offen lds', 'pf')]
    if PFMODE == 2: pfl.append((f'buffer_load_dword v{vPf}, {W}, s{sPf2} offen lds', 'pf'))
    if NO_PF: pfl = []
    plan = [
        (('v', 0, 0, WBA), [f'v_cmp_u_f32 s[{sCk}:{sCk+1}], v{MEM+1}, v{MEM+5}']),
        (('v', 1, 0, WBB), [f'v_cmp_u_f32 s[{sCk+2}:{sCk+3}], v{MEM+2}, v{MEM+6}']),
        (('q', 0, 0), [f'v_cmp_u_f32 vcc, v{MEM+3}, v{MEM+7}']),
        (('q', 1, 0), [f's_mov_b32 m0, s{sMKX}']),
        (('q', 0, 1), [b1, memrd(6)]),
        (('q', 1, 1), [memrd(7)]),
        (('k', 0, 0), [memrd(2), dkx[0], f's_mov_b32 m0, {L_D}', f's_mov_b64 exec, s[{sPfEx}:{sPfEx+1}]'] + pfl + ['s_mov_b64 exec, -1']),
        (('k', 1, 0), [memrd(3), f'v_mov_b64 v[{KV}:{KV+1}], -1']),
        (('k', 0, 1), [memrd(4), sc[0], sc[1]]),
        (('k', 1, 1), [memrd(5), sc[2], f'v_mov_b64 v[{KV+2}:{KV+3}], -1']),
        (('q', 0, 6, QT), [q7[0], sc[3], sc[4]]),
        (('q', 1, 6, QT + 8), [q7[1], f's_add_u32 s{sPf}, s{sPf}, s{sPfInc}', f's_add_u32 s{sPf2}, s{sPf2}, s{sPfInc}']),
        (('q', 0, 2), [q7[2], f's_mov_b32 m0, s{sMKX}']),
        (('q', 1, 2), [q7[3], sc[5]]),
        (('q', 0, 3), [k6[0], sc[6], sc[7]]),
        (('q', 1, 3), [k6[1], sc[8]]),
        (('q', 0, 4), [k6[2], sc[9], sc[10]]),
        (('q', 1, 4), [k6[3], sc[11], rs[0]]),
        (('q', 0, 7, WBA), [sc[12], sc[13], rs[1]]),
        (('q', 1, 7, WBB), [k7[0], sc[14], sc[15]]),
        (('q', 0, 5), [k7[1], rs[2]]),
        (('q', 1, 5), [k7[2], lambda: stamp(1)]),
        (('k', 0, 6, QT), [k7[3], 's_nop 1']),
        (('k', 1, 6, QT + 8), [v1[0], qp[0]]),
        (('k', 0, 2), [v1[1], qp[1]]),
        (('k', 0, 3), [v1[2], lambda: A.wait_ds(('w', WBB)), qp[2]]),
        (('k', 0, 7, WBA), [v1[3], qp[3]]),
        (('k', 1, 7, WBB), [kxrd2(1, 0), qp[4]]),
        (('k', 0, 4), [kxrd2(1, 1), qp[5]]),
        (('k', 0, 5), [kxrd2(1, 2), qp[6]]),
        (('k', 1, 2), [kxrd2(1, 3), qp[7]]),
        (('k', 1, 3), [qp[8]]),
        (('k', 1, 4), [lambda: A.wait_ds(('w', QT + 8)), qp[9]]),
        (('k', 1, 5), [(f'ds_write2_b32 v{vQw}, v{AQ}, v{AQ+4} offset0:1 offset1:129', 'qw'), lambda: stamp(2), kp0[0]]),
        (('v', 0, 1, QT), ['s_nop 1', kp0[1]]),
        (('v', 1, 1, QT + 8), ['s_nop 1', kp0[2]] + kp1 + [(f'ds_write2_b32 v{vQw}, v{KV}, v{KV+1} offset0:0 offset1:128', 'kw')]),
        (('v', 0, 2), []),
        (('v', 1, 2), []),
        (('v', 0, 3), []),
        (('v', 1, 3), [lambda: A.wait_ds('kw'), 's_barrier', lambda: stamp(3)] + frd[0:2]),
        (('v', 0, 4), frd[2:4]),
        (('v', 1, 4), frd[4:6]),
        (('v', 0, 5), frd[6:8]),
        (('v', 1, 5), [dkx[1], dkx[2]]),
        (('v', 0, 6), [lambda: A.wait_vm('g'), f's_mov_b32 m0, s{sMVX}']),
        (('v', 1, 6), [(f'ds_read_b128 v[{MEM+12}:{MEM+15}], v{vMw} offset:{L_VX}', 'vx')]),
        (('v', 0, 7), [(f'ds_read_b128 v[{MEM+16}:{MEM+19}], v{vMw} offset:{L_VX + 1024}', 'vx')]),
        (('v', 1, 7), [lambda: A.wait_ds(('f', 3)), lambda: stamp(4)]),
    ]
    for mm, fl in plan:
        if mm: sm(*mm)
        EL(fl)
    X = AQ; TT = vT[3]; MX = vT[2]
    ET = MEM
    VXR = MEM + 12; ONES = MEM + 20
    PX = AK + 4
    def smm(d, a, ks):
        c = '0' if ks == 0 else f'v[{d}:{d+3}]'
        A(f'v_mfma_f32_16x16x32_bf16 v[{d}:{d+3}], v[{a}:{a+3}], v[{QT+4*ks}:{QT+4*ks+3}], {c}')
    vp = post(AV, KV + 2) + post(AV + 4, KV + 3)
    o0 = ldw_i('o', 0, 0, KXB) + ldw_i('o', 1, 0, KXB + 8)
    o1 = ldw_i('o', 0, 1, WBA) + ldw_i('o', 1, 1, WBB)
    ex = lambda i, src: f'v_exp_f32 v{ET+i}, v{src}'
    def kmstore(): E((f'buffer_store_dwordx4 v[{KV}:{KV+3}], v{vXl}, {W}, s{sKM} offen {kv_flags} {KMF}', 'km'))
    smm(X, KXB, 0); A(f'v_mov_b64 v[{ONES}:{ONES+1}], s[{sOnes}:{sOnes+1}]'); A(f'v_mov_b64 v[{ONES+2}:{ONES+3}], s[{sOnes}:{sOnes+1}]')
    smm(X, KXB + 4, 1); A('s_nop 2')
    smm(X, KXB + 8, 2); EL(vp[0:2])
    smm(X, KXB + 12, 3); A.wait_ds('vx'); EL(vp[2:4])
    smm(X + 4, WBA, 0); E(o0[0]); EL(vp[4:6])
    smm(X + 4, WBA + 4, 1); E(o0[1]); E(dvx[0]); E(dvx[1])
    smm(X + 4, WBA + 8, 2); E(o0[2]); E(ex(0, X))
    smm(X + 4, WBA + 12, 3); E(o0[3]); E(ex(1, X + 1))
    smm(AK, QT, 0); E(o1[0]); E(ex(2, X + 2))
    smm(AK, QT + 4, 1); E(o1[1]); E(ex(3, X + 3))
    smm(AK, QT + 8, 2); E(o1[2]); E(ex(4, X + 4))
    smm(AK, QT + 12, 3); E(o1[3]); E(ex(5, X + 5))
    stamp(5)
    EL([ex(6, X + 6), ex(7, X + 7)])
    for n in range(4): A(f'v_cvt_pk_bf16_f32 v{PX+n}, v{ET+2*n}, v{ET+2*n+1}')
    LL = MEM + 24; O0 = QT; O1 = QT + 4
    def pv(mid=None):
        A(f'v_mfma_f32_16x16x32_bf16 v[{LL}:{LL+3}], v[{ONES}:{ONES+3}], v[{PX}:{PX+3}], 0')
        if mid: EL(mid[0])
        A(f'v_mfma_f32_16x16x32_bf16 v[{O0}:{O0+3}], v[{VXR}:{VXR+3}], v[{PX}:{PX+3}], 0')
        if mid: EL(mid[1])
        A(f'v_mfma_f32_16x16x32_bf16 v[{O1}:{O1+3}], v[{VXR+4}:{VXR+7}], v[{PX}:{PX+3}], 0')
        if mid: EL(mid[2])
        A(f'v_mfma_f32_16x16x16_bf16 v[{LL}:{LL+3}], v[{ONES}:{ONES+1}], v[{PM}:{PM+1}], v[{LL}:{LL+3}]')
        if mid: EL(mid[3])
        A(f'v_mfma_f32_16x16x16_bf16 v[{O0}:{O0+3}], v[{KV+2}:{KV+3}], v[{PM}:{PM+1}], v[{O0}:{O0+3}]')
        if mid: EL(mid[4])
        A(f'v_mfma_f32_16x16x16_bf16 v[{O1}:{O1+3}], v[{KV+2}:{KV+3}], v[{PM+2}:{PM+3}], v[{O1}:{O1+3}]')
        if mid: EL(mid[5])
    EL([ex(8, AK)])
    pv([[ex(9, AK + 1)],
        [f'v_cvt_pk_bf16_f32 v{PM}, v{ET+8}, v{ET+9}', f'v_cvt_pk_bf16_f32 v{PM+3}, v{ET+8}, v{ET+9}'],
        [f'v_max3_f32 v{MX}, |v{X}|, |v{X+1}|, |v{X+2}|', f'v_max3_f32 v{TT}, |v{X+3}|, |v{X+4}|, |v{X+5}|'],
        [f'v_max3_f32 v{MX}, v{MX}, |v{X+6}|, |v{X+7}|', f'v_max3_f32 v{TT}, v{TT}, |v{AK}|, |v{AK+1}|'],
        [f'v_max_f32 v{MX}, v{MX}, v{TT}', f'v_cmp_lt_f32 vcc, s{sThr}, v{MX}'],
        [f's_cmp_eq_u32 s{sStep}, {nsteps-1}', 's_cbranch_scc1 L_ch_last',
         f's_and_b64 vcc, vcc, s[{sVal}:{sVal+1}]', 's_cbranch_scc1 L_ch_slow' if not NOHOP else 's_nop 0']])
    A.label('L_ch_pvdone')
    A(f'v_rcp_f32 v{TT}, v{LL}')
    E(dvx[2])
    for i in range(0, 8, 2): A(f'v_pk_mul_f32 v[{O0+i}:{O0+i+1}], v[{O0+i}:{O0+i+1}], v[{TT-1}:{TT}] op_sel:[0,1] op_sel_hi:[1,1]')
    for i in range(4): A(f'v_cvt_pk_bf16_f32 v{O0+i}, v{O0+2*i}, v{O0+2*i+1}')
    A(f'ds_write_b128 v{vOw}, v[{O0}:{O0+3}]', 'ow')
    stamp(6)
    A.wait_vm('dkx0')
    kmstore()
    pre_zero(MEM, MEM + 12)
    A.wait_ds('ow')
    A('s_barrier')
    OA = AQ
    A(f'ds_read_b128 v[{OA}:{OA+3}], v{vOr}', ('oa', 0))
    A(f'ds_read_b128 v[{OA+4}:{OA+7}], v{vOr} offset:1024', ('oa', 1))
    pre_zero(MEM + 12, MEM + 32)
    zl = [f'v_cndmask_b32 v{KV+k}, 0, v{vSel}, s[{sMask[k]}:{sMask[k]+1}]' for k in range(4)] + ['s_nop 0']
    A.wait_ds(('oa', 1))
    stamp(7)
    obuf = {(0, 0): KXB, (1, 0): KXB + 8, (0, 1): WBA, (1, 1): WBB}
    def so(tile, t):
        d = MEM + 4 * tile
        A(f'v_smfmac_f32_16x16x64_bf16 v[{d}:{d+3}], v[{OA+4*t}:{OA+4*t+3}], {wop("o", tile, t, obuf.get((tile, t)))}, v{vIdx}')
    PK = AK
    SEL = KV; RD = AV; RL = MEM + 8
    op = lambda t: post(MEM + 4 * t, PK + t)
    def pst(p): return (f'buffer_store_dwordx2 v[{PK+2*p}:{PK+2*p+1}], v{vPst}, {W}, s{sPartSt0 if p < 2 else sPartSt1} offen offset:{(p%2)*2048}', 'ps')
    P = [op(t) for t in range(8)]
    oplan = [
        ((0, 0), [f's_add_u32 s{sKM}, s{sKM}, {KMINC}', zl[0]]), ((0, 1), ['s_nop 1', zl[1]]), ((1, 0), ['s_nop 1', zl[2]]), ((1, 1), ['s_nop 0', zl[3]]),
        ((2, 0), [zl[4], P[0][0]]), ((2, 1), [f's_add_u32 s{sStep}, s{sStep}, 1', P[0][1], P[0][2]]), ((3, 0), [P[1][0]]), ((3, 1), [P[1][1], P[1][2]]),
        ((4, 0), [pst(0), P[2][0]]), ((4, 1), [P[2][1], P[2][2]]), ((5, 0), [P[3][0]]), ((5, 1), [P[3][1], P[3][2]]),
        ((6, 0), [pst(1), P[4][0]]), ((6, 1), [P[4][1], P[4][2]]), ((7, 0), [P[5][0]]), ((7, 1), [P[5][1], P[5][2], pst(2)]),
    ]
    for mm, fl in oplan:
        so(*mm); EL(fl)
    for t in (6, 7):
        d = MEM + 4 * t
        A(f'v_pk_add_f32 v[{d}:{d+1}], v[{d}:{d+1}], v[{d+2}:{d+3}]')
        A(f'v_cvt_pk_bf16_f32 v{PK+t}, v{d}, v{d+1}')
    E(pst(3))
    stamp(8)
    if DIAG:
        for n, cnt in enumerate((8, 7, 4, 3, 2, 1, 0)):
            A(f's_waitcnt vmcnt({cnt})'); stamp(2 + n, True)
    def rload():
        A(f'buffer_load_dwordx4 v[{RL}:{RL+3}], v{vRed}, {W}, s{sRed} offen sc1', 'r')
        A(f'buffer_load_dwordx4 v[{RL+4}:{RL+7}], v{vRed}, {W}, s{sRed} offen offset:1024 sc1', 'r')
    pw = ldw_i('v', 0, 0, WBA) + ldw_i('v', 1, 0, WBB) + ldw_i('q', 0, 6, QT) + ldw_i('q', 1, 6, QT + 8) + [kxrd2(0, ks) for ks in range(4)]
    zz = [f'v_mov_b64 v[{r}:{r+1}], 0' for r in list(range(AQ, AK + 8, 2)) + [AV + 4, AV + 6]] + [f'v_xor_b32 v{vT[a-1]}, {a << 11}, v{vMw}' for a in (1, 2, 3)]
    chores = [zz, pw[0:4], pw[4:8], pw[8:12]]
    A(f's_mov_b32 s{sSpin}, 0')
    for wv in range(4):
        EL(chores[wv])
        for _ in range(RED_DELAY): A('s_nop 3')
        A(f's_cmp_lg_u32 s{sWave}, {wv}')
        A(f's_cbranch_scc1 L_ch_st{wv}')
        rload()
        A.label(f'L_ch_st{wv}')
    A.label('L_ch_r1')
    A('s_waitcnt vmcnt(0)')
    A(f'v_mfma_f32_16x16x32_bf16 v[{RD}:{RD+3}], v[{SEL}:{SEL+3}], v[{RL}:{RL+3}], 0')
    A(f'v_cmp_u_f32 vcc, v{RL}, v{RL+4}')
    A(f'v_mfma_f32_16x16x32_bf16 v[{RD}:{RD+3}], v[{SEL}:{SEL+3}], v[{RL+4}:{RL+7}], v[{RD}:{RD+3}]')
    A('s_cbranch_vccnz L_ch_r' if not NOHOP else 's_nop 0')
    for rot in (4, 8):
        for r in (RD, RD + 1):
            A(f'v_add_f32_dpp v{r}, v{r}, v{r} row_ror:{rot} row_mask:0xf bank_mask:0xf')
    A(f'v_cvt_pk_bf16_f32 v{PM}, v{RD}, v{RD+1}')
    A(f'v_cmpx_o_f32 vcc, v{RD}, v{RD+1}')
    A(f'buffer_store_dword v{PM}, v{vPub}, {W}, s{sPub} offen', 'pub')
    A('s_mov_b64 exec, -1')
    A('s_cmp_eq_u64 vcc, -1')
    A('s_cbranch_scc0 L_ch_r' if not NOHOP else 's_nop 0')
    stamp(9)
    if timing: A(f's_add_u32 s{sPr}, s{sPr}, s{sSpin}')
    A('s_branch L_ch_step')
    A.label('L_ch_r')
    rload()
    A(f's_add_u32 s{sSpin}, s{sSpin}, 1')
    A(f's_cmp_gt_u32 s{sSpin}, {SPIN_MAX}')
    A('s_cbranch_scc1 L_ch_fail')
    A('s_branch L_ch_r1')
    A.label('L_ch_torn')
    A('s_nop 7')
    pre_zero(AQ, AV + 8)
    A('s_waitcnt vmcnt(0)')
    gload()
    A('s_branch L_ch_g')
    A.label('L_ch_slow')
    A('s_nop 7')
    A(f'v_max3_f32 v{MX}, v{X}, v{X+1}, v{X+2}')
    A(f'v_max3_f32 v{MX}, v{MX}, v{X+3}, v{X+4}')
    A(f'v_max3_f32 v{MX}, v{MX}, v{X+5}, v{X+6}')
    A(f'v_max3_f32 v{MX}, v{MX}, v{X+7}, v{AK}')
    A(f'v_max_f32 v{MX}, v{MX}, v{AK+1}')
    A(f'v_mov_b32 v{TT}, v{MX}')
    A(f'v_permlane32_swap_b32 v{MX}, v{TT}')
    A(f'v_max_f32 v{MX}, v{MX}, v{TT}')
    A(f'v_mov_b32 v{TT}, v{MX}')
    A(f'v_permlane16_swap_b32 v{MX}, v{TT}')
    A(f'v_max_f32 v{MX}, v{MX}, v{TT}')
    vs = [X + i for i in range(8)] + [AK, AK + 1]
    for n, r in enumerate(vs): A(f'v_sub_f32 v{ET+n}, v{r}, v{MX}')
    for n, r in enumerate(vs): A(f'v_exp_f32 v{ET+n}, v{ET+n}')
    for n in range(4): A(f'v_cvt_pk_bf16_f32 v{PX+n}, v{ET+2*n}, v{ET+2*n+1}')
    A(f'v_cvt_pk_bf16_f32 v{PM}, v{ET+8}, v{ET+9}'); A(f'v_cvt_pk_bf16_f32 v{PM+3}, v{ET+8}, v{ET+9}')
    pv()
    A('s_nop 7')
    A('s_branch L_ch_pvdone')
    A.label('L_ch_last')
    kmstore()
    A('s_branch L_ch_done')
    A.label('L_ch_fail')
    A(f's_mov_b32 s{sFail}, 1')
    A.label('L_ch_done')
    if timing:
        A('s_waitcnt vmcnt(0) lgkmcnt(0)')
        if LIGHT:
            A(f's_memtime s[{sSt+2}:{sSt+3}]'); A('s_waitcnt lgkmcnt(0)'); A(f's_sub_u32 s{sAcc}, s{sSt+2}, s{sSt}')
        A(f's_memrealtime s[{sSt}:{sSt+1}]'); A('s_waitcnt lgkmcnt(0)')
        A(f's_sub_u32 s{sT0}, s{sSt}, s{sRt}')
        A(f's_sub_u32 s{sT1}, s{sRt}, s{sRt0}')
        srcs = [sAcc + i for i in range(NST)] + [sPg, sPr, sFail, sT0, sT1]
        for i, sr in enumerate(srcs): A(f'v_mov_b32 v{16+i}, s{sr}')
        A(f"""
s_lshl_b32 s{sT0}, s{sH}, 8
s_lshl_b32 s{sT1}, s{sWave}, 6
s_add_u32 s{sT0}, s{sT0}, s{sT1}
s_add_u32 s{sT0}, s{sT0}, {OFF_TIM}
v_mov_b32 v12, 0
s_mov_b64 exec, 1
""")
        for i in range(4):
            A(f'buffer_store_dwordx4 v[{16+4*i}:{19+4*i}], v12, {W}, s{sT0} offen offset:{16*i}')
    A('s_waitcnt vmcnt(0) lgkmcnt(0)')

def gen_standalone(timing=False, nsteps=64):
    A = Asm()
    A.raw('; @launch grid=(256,1,1) block=(256,1,1) lds=163840')
    A.raw('.amdgcn_target "amdgcn-amd-amdhsa--gfx950"\n.text\n.globl chain_kernel\n.p2align 8\n.type chain_kernel,@function\nchain_kernel:')
    A(f'''
s_cmp_ge_u32 s2, 256
s_cbranch_scc1 L_end
s_load_dwordx2 s[{sWS}:{sWS+1}], s[0:1], 120
s_load_dwordx2 s[{sDBG}:{sDBG+1}], s[0:1], 112
s_load_dwordx2 s[{sWQ}:{sWQ+1}], s[0:1], 16
s_load_dwordx2 s[{sWK}:{sWK+1}], s[0:1], 24
s_load_dwordx2 s[{sWV}:{sWV+1}], s[0:1], 32
s_load_dwordx2 s[{sWO}:{sWO+1}], s[0:1], 40
s_load_dwordx2 s[{sM0}:{sM0+1}], s[0:1], 8
s_memrealtime s[{sRt0}:{sRt0+1}]
s_getreg_b32 s3, hwreg(HW_REG_XCC_ID)
s_and_b32 s3, s3, 15
s_cmp_lg_u32 s3, 0
s_cbranch_scc1 L_end
v_lshrrev_b32 v1, 6, v0
s_mov_b32 s{sWS+2}, {WS_BYTES}
s_mov_b32 s{sWS+3}, 0x20000
s_mov_b32 s{sDBG+2}, 256
s_mov_b32 s{sDBG+3}, 0x20000
v_readfirstlane_b32 s{sWave}, v1
''')
    for s in (sWQ, sWK, sWV, sWO):
        A(f's_mov_b32 s{s+2}, 0x400000'); A(f's_mov_b32 s{s+3}, 0x20000')
    A(f's_mov_b32 s{sM0+2}, 8192'); A(f's_mov_b32 s{sM0+3}, 0x20000')
    A(f'''
s_waitcnt lgkmcnt(0)
s_cmp_lg_u32 s{sWave}, 0
s_cbranch_scc1 L_norank
v_mov_b32 v2, {DBG_RANK0*4}
v_mov_b32 v3, 1
s_mov_b64 exec, 1
buffer_atomic_add v3, v2, s[{sDBG}:{sDBG+3}], 0 offen sc0
s_waitcnt vmcnt(0)
s_mov_b64 exec, -1
v_readfirstlane_b32 s{sH}, v3
v_lshlrev_b32 v2, 13, v0
v_mov_b32 v3, s{sH}
s_mov_b64 exec, 15
ds_write_b32 v2, v3
s_mov_b64 exec, -1
s_waitcnt lgkmcnt(0)
L_norank:
s_barrier
v_lshlrev_b32 v2, 13, v1
ds_read_b32 v3, v2
s_waitcnt lgkmcnt(0)
v_readfirstlane_b32 s{sH}, v3
s_nop 3
s_cmp_ge_u32 s{sH}, {NCU}
s_cbranch_scc1 L_end
''')
    A.dsq = []; A.vmq = []
    gen_chain(A, timing=timing, nsteps=nsteps)
    A.label('L_end')
    A('s_endpgm')
    A.raw('''.section .rodata,"a"
.p2align 6
.amdhsa_kernel chain_kernel
  .amdhsa_next_free_vgpr 512
  .amdhsa_next_free_sgpr 102
  .amdhsa_accum_offset 256
  .amdhsa_group_segment_fixed_size 0
  .amdhsa_kernarg_size 128
  .amdhsa_user_sgpr_count 2
  .amdhsa_user_sgpr_kernarg_segment_ptr 1
  .amdhsa_system_sgpr_workgroup_id_x 1
  .amdhsa_float_denorm_mode_32 3
.end_amdhsa_kernel''')
    return A.text()
```

```python
from asmlib import Asm
import chain as C

OFF_H = 0x4000000
NTILES = 440
sWS, sDBG = C.sWS, C.sDBG
sWave = C.sWave
sX = 20
sWt = 24
sB1 = 28
sPq, sPk, sPv, sPw1 = 32, 34, 36, 38
sTile, sTb, sCt, sTyp, sStride, sOut, sK = 40, 41, 42, 43, 44, 45, 46
sT0, sT1, sXo, sWo_, sM0x, sM0w, sNW, sStr2 = 47, 48, 49, 50, 51, 52, 53, 54
sFlag = 55
vLane, vXs, vWs0, vWs1 = 1, 2, 3, 4
vXa = [5, 6, 7, 8]
vWa = [9, 10, 11, 12]
vSt, vT0, vT1, vT2 = 13, 14, 15, 16
FX = [32, 64]
FW = [48, 80]
EP = 96
BI = 128
STG = 65536

def gen_setup(A):
    A(f'''
v_and_b32 v{vLane}, 63, v0
; x DMA source: row = l/8 ; chunk = (l%8) ^ ((row/2)%8 with row including 8*instr index -> handled below)
v_lshrrev_b32 v{vT0}, 3, v{vLane}
v_and_b32 v{vT1}, 7, v{vLane}
v_lshrrev_b32 v{vT2}, 1, v{vT0}
v_xor_b32 v{vT1}, v{vT1}, v{vT2}
v_lshlrev_b32 v{vXs}, 10, v{vT0}
v_lshl_add_u32 v{vXs}, v{vT1}, 4, v{vXs}
v_and_b32 v{vT0}, 31, v{vLane}               ; row
v_lshrrev_b32 v{vT1}, 5, v{vLane}            ; hh
v_bfe_u32 v{vT2}, v{vLane}, 1, 3             ; swz
s_lshr_b32 s{sT0}, s{sWave}, 1
s_lshl_b32 s{sT0}, s{sT0}, 14
''')
    for kk in range(4):
        A(f'''
v_add_u32 v{vXa[kk]}, {2*kk}, v{vT1}
v_xor_b32 v{vXa[kk]}, v{vXa[kk]}, v{vT2}
v_lshlrev_b32 v{vXa[kk]}, 4, v{vXa[kk]}
v_lshl_add_u32 v{vXa[kk]}, v{vT0}, 7, v{vXa[kk]}
v_add_u32 v{vXa[kk]}, s{sT0}, v{vXa[kk]}
''')
    A(f'''
v_bfe_u32 v{vT0}, v{vLane}, 2, 2             ; r'
v_lshl_add_u32 v{vT2}, v{vT1}, 3, v{vT0}     ; 8hh + r'
v_lshlrev_b32 v{vT2}, 9, v{vT2}
v_bfe_u32 v{vSt}, v{vLane}, 4, 1
v_lshl_add_u32 v{vT2}, v{vSt}, 5, v{vT2}
v_and_b32 v{vSt}, 3, v{vLane}
v_lshl_add_u32 v{vT2}, v{vSt}, 3, v{vT2}
s_and_b32 s{sT0}, s{sWave}, 1
s_lshl_b32 s{sT0}, s{sT0}, 8
s_add_u32 s{sT0}, s{sT0}, 32768
v_add_u32 v{vT2}, s{sT0}, v{vT2}
''')
    for nt in range(4):
        A(f'v_xor_b32 v{vWa[nt]}, {nt}, v{vT0}')
        A(f'v_lshl_add_u32 v{vWa[nt]}, v{vWa[nt]}, 6, v{vT2}')
    A(f'''
s_lshl_b32 s{sM0x}, s{sWave}, 13
s_add_u32 s{sM0w}, s{sM0x}, 32768
''')

def gen_tiles(A, st_flags='', signal=None, lbl='sa'):
    W = f's[{sWS}:{sWS+3}]'
    A.label(f'L_{lbl}_tile')
    A(f'''
s_cmp_ge_u32 s{sTile}, 256
s_cbranch_scc1 L_{lbl}_d2
s_cmp_ge_u32 s{sTile}, 224
s_cbranch_scc1 L_{lbl}_d1
s_mul_i32 s{sCt}, s{sTile}, 9363
s_lshr_b32 s{sCt}, s{sCt}, 16
s_mul_i32 s{sT0}, s{sCt}, 7
s_sub_u32 s{sTb}, s{sTile}, s{sT0}
s_branch L_{lbl}_dkv
L_{lbl}_d1:
s_sub_u32 s{sCt}, s{sTile}, 224
s_mov_b32 s{sTb}, 7
L_{lbl}_dkv:
s_mov_b32 s{sStride}, 8192
s_mov_b32 s{sWt+2}, 0x400000
s_cmp_ge_u32 s{sCt}, 16
s_cbranch_scc1 L_{lbl}_dv
s_mov_b32 s{sTyp}, 0
s_mov_b32 s{sWt}, s{sPk}
s_mov_b32 s{sWt+1}, s{sPk+1}
s_mov_b32 s{sOut}, {C.OFF_KX}
s_branch L_{lbl}_dq2
L_{lbl}_dv:
s_sub_u32 s{sCt}, s{sCt}, 16
s_mov_b32 s{sTyp}, 1
s_mov_b32 s{sWt}, s{sPv}
s_mov_b32 s{sWt+1}, s{sPv+1}
s_mov_b32 s{sOut}, {C.OFF_VX}
s_branch L_{lbl}_dq2
L_{lbl}_d2:
s_and_b32 s{sTb}, s{sTile}, 7
s_cmp_ge_u32 s{sTile}, 384
s_cbranch_scc1 L_{lbl}_dh
s_sub_u32 s{sCt}, s{sTile}, 256
s_lshr_b32 s{sCt}, s{sCt}, 3
s_mov_b32 s{sStride}, 8192
s_mov_b32 s{sWt+2}, 0x400000
s_mov_b32 s{sTyp}, 0
s_mov_b32 s{sWt}, s{sPq}
s_mov_b32 s{sWt+1}, s{sPq+1}
s_mov_b32 s{sOut}, {C.OFF_QX}
L_{lbl}_dq2:
s_lshl_b32 s{sT0}, s{sTb}, 3
s_lshr_b32 s{sT1}, s{sWave}, 1
s_lshl_b32 s{sT1}, s{sT1}, 2
s_add_u32 s{sT0}, s{sT0}, s{sT1}
s_lshl_b32 s{sT0}, s{sT0}, 5
s_lshl_b32 s{sT1}, s{sCt}, 1
s_add_u32 s{sT0}, s{sT0}, s{sT1}
s_and_b32 s{sT1}, s{sWave}, 1
s_add_u32 s{sT0}, s{sT0}, s{sT1}
s_lshl_b32 s{sT0}, s{sT0}, 13
s_add_u32 s{sOut}, s{sOut}, s{sT0}
s_branch L_{lbl}_dd
L_{lbl}_dh:
s_sub_u32 s{sCt}, s{sTile}, 384
s_lshr_b32 s{sCt}, s{sCt}, 3
s_mov_b32 s{sStride}, 3584
s_mov_b32 s{sWt+2}, {512*3584}
s_mov_b32 s{sTyp}, 2
s_mov_b32 s{sWt}, s{sPw1}
s_mov_b32 s{sWt+1}, s{sPw1+1}
s_lshl_b32 s{sT0}, s{sTb}, 3
s_lshr_b32 s{sT1}, s{sWave}, 1
s_lshl_b32 s{sT1}, s{sT1}, 2
s_add_u32 s{sT0}, s{sT0}, s{sT1}
s_mul_i32 s{sT0}, s{sT0}, 56
s_lshl_b32 s{sT1}, s{sCt}, 3
s_add_u32 s{sT0}, s{sT0}, s{sT1}
s_and_b32 s{sT1}, s{sWave}, 1
s_lshl_b32 s{sT1}, s{sT1}, 2
s_add_u32 s{sT0}, s{sT0}, s{sT1}
s_lshl_b32 s{sT0}, s{sT0}, 11
s_add_u32 s{sOut}, s{sT0}, {OFF_H}
L_{lbl}_dd:
s_mov_b32 s{sWt+3}, 0x20000
s_lshl_b32 s{sXo}, s{sTb}, 18
s_lshl_b32 s{sT0}, s{sWave}, 16
s_add_u32 s{sXo}, s{sXo}, s{sT0}
s_lshl_b32 s{sT0}, s{sWave}, 4
s_mul_i32 s{sWo_}, s{sT0}, s{sStride}
s_lshl_b32 s{sT0}, s{sCt}, 9
s_add_u32 s{sWo_}, s{sWo_}, s{sT0}
s_lshl_b32 s{sStr2}, s{sStride}, 1
; W DMA lane offsets: row=l/32 ; c=l%32 ; src block = (c/4) ^ (2*(j%2)+row)
v_lshrrev_b32 v{vT0}, 5, v{vLane}
v_and_b32 v{vT1}, 31, v{vLane}
v_lshlrev_b32 v{vT2}, 2, v{vT0}
v_xor_b32 v{vT1}, v{vT1}, v{vT2}
v_lshlrev_b32 v{vT1}, 4, v{vT1}
v_mul_lo_u32 v{vT0}, v{vT0}, s{sStride}
v_add_u32 v{vWs0}, v{vT0}, v{vT1}
v_xor_b32 v{vT1}, 128, v{vT1}
v_add_u32 v{vWs1}, v{vT0}, v{vT1}
v_xor_b32 v{vT2}, 64, v{vXs}
''')
    vXs1 = vT2
    def dma_list(buf):
        L = []
        for j in range(8):
            L.append([f's_add_u32 m0, s{sM0x}, {buf*STG + j*1024}', f's_add_u32 s{sT0}, s{sXo}, {j*8192}',
                      (f'buffer_load_dwordx4 v{vXs if j % 2 == 0 else vXs1}, s[{sX}:{sX+3}], s{sT0} offen lds', 'dma')])
        for j in range(8):
            L.append([f's_add_u32 m0, s{sM0w}, {buf*STG + j*1024}', f's_mov_b32 s{sT1}, s{sWo_}' if j == 0 else f's_add_u32 s{sT1}, s{sT1}, s{sStr2}',
                      (f'buffer_load_dwordx4 v{vWs0 if j % 2 == 0 else vWs1}, s[{sWt}:{sWt+3}], s{sT1} offen lds', 'dma')])
        L[-1] += [f's_add_u32 s{sXo}, s{sXo}, 128', f's_lshl_b32 s{sT0}, s{sStride}, 6', f's_add_u32 s{sWo_}, s{sWo_}, s{sT0}']
        return L
    def E(x):
        if isinstance(x, tuple): A(x[0], x[1])
        else: A(x)
    for grp in dma_list(0):
        for x in grp: E(x)
    def frag_reads(buf, kk, fb):
        L = []
        for mt in range(4):
            L.append((f'ds_read_b128 v[{FX[fb]+4*mt}:{FX[fb]+4*mt+3}], v{vXa[kk]} offset:{mt*4096}', ('f', fb)))
        for nt in range(4):
            for q in range(2):
                L.append((f'ds_read_b64_tr_b16 v[{FW[fb]+4*nt+2*q}:{FW[fb]+4*nt+2*q+1}], v{vWa[nt]} offset:{(16*kk+4*q)*512}', ('f', fb)))
        return L
    def main(typ_v, tag):
        A(f's_mov_b32 s{sK}, 0')
        A.label(f'L_{lbl}_k{tag}')
        A.dsq = []; A.vmq = []
        for buf in range(2):
            A('s_waitcnt vmcnt(0)')
            A('s_barrier')
            for x in frag_reads(buf, 0, 0): E(x)
            dl = dma_list(1 - buf)
            if buf == 1:
                pass
            for kk in range(4):
                fb = kk % 2
                nxt = frag_reads(buf, kk + 1, 1 - fb) if kk < 3 else []
                A.wait_ds(('f', fb))
                n = 0
                for mt in range(4):
                    for nt in range(4):
                        d = (mt * 4 + nt) * 16
                        xa = f'v[{FX[fb]+4*mt}:{FX[fb]+4*mt+3}]'; wa = f'v[{FW[fb]+4*nt}:{FW[fb]+4*nt+3}]'
                        a, b = (xa, wa) if typ_v else (wa, xa)
                        A(f'v_mfma_f32_32x32x16_bf16 a[{d}:{d+15}], {a}, {b}, a[{d}:{d+15}]')
                        if n < len(nxt): E(nxt[n])
                        if kk < 2 and n % 2 == 1:
                            grp = dl[kk * 8 + n // 2]
                            if buf == 1:
                                A(f's_cmp_eq_u32 s{sK}, 3'); A(f's_cbranch_scc1 L_{lbl}_sk{tag}_{kk}_{n}')
                            for x in grp: E(x)
                            if buf == 1: A.label(f'L_{lbl}_sk{tag}_{kk}_{n}')
                        n += 1
            for r in vXa + vWa: A(f'v_xor_b32 v{r}, {STG}, v{r}')
        A(f's_add_u32 s{sK}, s{sK}, 1')
        A(f's_cmp_lt_u32 s{sK}, 4')
        A(f's_cbranch_scc1 L_{lbl}_k{tag}')
    for r in range(256): A(f'v_accvgpr_write_b32 a{r}, 0')
    A(f's_cmp_eq_u32 s{sTyp}, 1')
    A(f's_cbranch_scc1 L_{lbl}_mv')
    main(False, 't')
    A(f's_branch L_{lbl}_ep')
    A.label(f'L_{lbl}_mv')
    main(True, 'v')
    A.label(f'L_{lbl}_ep')
    A('s_nop 15')
    A(f's_cmp_eq_u32 s{sTyp}, 2')
    A(f's_cbranch_scc1 L_{lbl}_eh')
    A(f'''
v_bfe_u32 v{vT0}, v{vLane}, 4, 1
v_lshlrev_b32 v{vSt}, 10, v{vT0}
v_lshrrev_b32 v{vT0}, 5, v{vLane}
v_lshl_add_u32 v{vSt}, v{vT0}, 8, v{vSt}
v_and_b32 v{vT0}, 15, v{vLane}
v_lshl_add_u32 v{vSt}, v{vT0}, 4, v{vSt}
''')
    n = 0
    for mt in range(4):
        for nt in range(4):
            d = (mt * 4 + nt) * 16
            if nt % 2 == 0: A(f's_add_u32 s{sT0}, s{sOut}, {mt*32*8192 + nt*2048}')
            for ap in range(2):
                t = EP + (n % 2) * 12; n += 1
                regs = [d + 4*ap + b for b in range(4)] + [d + 4*ap + 8 + b for b in range(4)]
                for i, r in enumerate(regs): A(f'v_accvgpr_read_b32 v{t+4+i}, a{r}')
                for i in range(4): A(f'v_cvt_pk_bf16_f32 v{t+i}, v{t+4+2*i}, v{t+5+2*i}')
                A(f'buffer_store_dwordx4 v[{t}:{t+3}], v{vSt}, {W}, s{sT0} offen offset:{(nt%2)*2048 + ap*512} {st_flags}', 'st')
    A(f's_branch L_{lbl}_done')
    A.label(f'L_{lbl}_eh')
    A(f'''
v_lshrrev_b32 v{vT0}, 5, v{vLane}
v_lshlrev_b32 v{vT0}, 3, v{vT0}
s_lshl_b32 s{sT0}, s{sCt}, 9
s_and_b32 s{sT1}, s{sWave}, 1
s_lshl_b32 s{sT1}, s{sT1}, 8
s_add_u32 s{sT0}, s{sT0}, s{sT1}
v_lshlrev_b32 v{vSt}, 4, v{vLane}
''')
    for nt in range(4):
        for a in range(4):
            r = 192 + (nt * 4 + a) * 2
            A(f'buffer_load_dwordx2 v[{r}:{r+1}], v{vT0}, s[{sB1}:{sB1+3}], s{sT0} offen offset:{nt*64 + a*16}', 'b')
    A('s_waitcnt vmcnt(0)'); A.vmq = []
    for i in range(32):
        A(f'v_lshlrev_b32 v{BI+2*i}, 16, v{192+i}')
        A(f'v_and_b32 v{BI+2*i+1}, 0xffff0000, v{192+i}')
    n = 0
    for mt in range(4):
        for nt in range(4):
            d = (mt * 4 + nt) * 16
            if nt % 2 == 0: A(f's_add_u32 s{sT0}, s{sOut}, {mt*56*2048 + nt*2048}')
            for ap in range(2):
                t = EP + (n % 2) * 12; n += 1
                idx = [4*ap + b for b in range(4)] + [4*ap + 8 + b for b in range(4)]
                for i, r in enumerate(idx): A(f'v_accvgpr_read_b32 v{t+4+i}, a{d+r}')
                for i in range(4): A(f'v_cvt_pk_bf16_f32 v{t+i}, v{t+4+2*i}, v{t+5+2*i}')
                for i in range(4):
                    A(f'v_lshlrev_b32 v{t+4+2*i}, 16, v{t+i}')
                    A(f'v_and_b32 v{t+5+2*i}, 0xffff0000, v{t+i}')
                for i, r in enumerate(idx): A(f'v_add_f32 v{t+4+i}, v{t+4+i}, v{BI + nt*16 + r}')
                for i in range(4): A(f'v_cvt_pk_bf16_f32 v{t+i}, v{t+4+2*i}, v{t+5+2*i}')
                for i in range(4):
                    A(f'v_lshlrev_b32 v{t+4+2*i}, 16, v{t+i}')
                    A(f'v_and_b32 v{t+5+2*i}, 0xffff0000, v{t+i}')
                for i in range(8): A(f'v_max_f32 v{t+4+i}, 0, v{t+4+i}')
                for i in range(8): A(f'v_mul_f32 v{t+4+i}, v{t+4+i}, v{t+4+i}')
                for i in range(4): A(f'v_cvt_pk_bf16_f32 v{t+i}, v{t+4+2*i}, v{t+5+2*i}')
                A(f'buffer_store_dwordx4 v[{t}:{t+3}], v{vSt}, {W}, s{sT0} offen offset:{(nt%2)*2048 + ap*1024} {st_flags}', 'st')
    A.label(f'L_{lbl}_done')
    if signal: signal(A)
    else: A('s_barrier')
    A(f's_add_u32 s{sTile}, s{sTile}, s{sNW}')
    A(f's_cmp_lt_u32 s{sTile}, {NTILES}')
    A(f's_cbranch_scc1 L_{lbl}_tile')

def load_args(A):
    A(f'''
s_load_dwordx2 s[{sX}:{sX+1}], s[0:1], 0
s_load_dwordx2 s[{sPq}:{sPq+1}], s[0:1], 16
s_load_dwordx2 s[{sPk}:{sPk+1}], s[0:1], 24
s_load_dwordx2 s[{sPv}:{sPv+1}], s[0:1], 32
s_load_dwordx2 s[{sPw1}:{sPw1+1}], s[0:1], 64
s_load_dwordx2 s[{sB1}:{sB1+1}], s[0:1], 72
s_mov_b32 s{sX+2}, 0x200000
s_mov_b32 s{sX+3}, 0x20000
s_mov_b32 s{sB1+2}, 3584
s_mov_b32 s{sB1+3}, 0x20000
''')

KD = '''.amdhsa_kernel {name}
  .amdhsa_next_free_vgpr 512
  .amdhsa_next_free_sgpr 102
  .amdhsa_accum_offset 256
  .amdhsa_group_segment_fixed_size 0
  .amdhsa_kernarg_size 128
  .amdhsa_user_sgpr_count 2
  .amdhsa_user_sgpr_kernarg_segment_ptr 1
  .amdhsa_system_sgpr_workgroup_id_x 1
  .amdhsa_float_denorm_mode_32 3
.end_amdhsa_kernel'''

def gen_kernel(A, name='stagea_kernel'):
    A.raw(f'.globl {name}\n.p2align 8\n.type {name},@function\n{name}:')
    A(f'''
s_cmp_ge_u32 s2, 256
s_cbranch_scc1 L_sa_end
s_load_dwordx2 s[{sWS}:{sWS+1}], s[0:1], 120
v_lshrrev_b32 v1, 6, v0
s_mov_b32 s{sWS+2}, {C.WS_BYTES}
s_mov_b32 s{sWS+3}, 0x20000
v_readfirstlane_b32 s{sWave}, v1
''')
    load_args(A)
    A(f'''
s_and_b32 s{sT0}, s2, 7
s_lshl_b32 s{sT0}, s{sT0}, 5
s_lshr_b32 s{sTile}, s2, 3
s_add_u32 s{sTile}, s{sTile}, s{sT0}
s_mov_b32 s{sNW}, 256
s_waitcnt lgkmcnt(0)
''')
    gen_setup(A)
    gen_tiles(A)
    A('s_waitcnt vmcnt(0)')
    A.label('L_sa_end')
    A('s_endpgm')

def gen_standalone():
    A = Asm()
    A.raw('; @launch grid=(256,1,1) block=(256,1,1) lds=163840')
    A.raw('.amdgcn_target "amdgcn-amd-amdhsa--gfx950"\n.text')
    gen_kernel(A)
    A.raw('.section .rodata,"a"\n.p2align 6\n' + KD.format(name='stagea_kernel'))
    return A.text()
```

```python
import math
from asmlib import Asm
import chain as C, stagea as S
from chain import fbits

OFF_O = 0x5000000
DBG_GRP = 32
SPIN_MAX = 400000
sWS, sDBG, sWave = C.sWS, C.sDBG, C.sWave
sX = S.sX
sWOr, sW2, sB2, sGW, sOUT = 56, 60, 64, 68, 72
sSeg, sNG, sCb, sGrp, sCnt, sHead = 76, 77, 78, 79, 80, 81
sT0, sT1, sT2, sSpin, sCc, sNL2e, sLw, sFail = 82, 83, 84, 85, 86, 87, 88, 89
L_W2 = 0
L_KM = 114688
L_RED = 131072
vLane, vL16, vFr, vTr, vKw, vKr, vVr, vRw, vRr, vXg, vOut, vG, vT0, vT1, vT2, vT3 = range(1, 17)
BI2 = 18
MASK = 24
ACA = 40; ACB = 56
QF = 72; KF = 104; SX = 136; SM = 152; VF = 168; RAW = 184; OT = 200; PB = 232; VM = 244
RING = 72

def load_args(A):
    A(f'''
s_load_dwordx2 s[{sWOr}:{sWOr+1}], s[0:1], 40
s_load_dwordx2 s[{sW2}:{sW2+1}], s[0:1], 80
s_load_dwordx2 s[{sB2}:{sB2+1}], s[0:1], 88
s_load_dwordx2 s[{sGW}:{sGW+1}], s[0:1], 96
s_load_dwordx2 s[{sOUT}:{sOUT+1}], s[0:1], 104
s_mov_b32 s{sWOr+2}, 0x400000
s_mov_b32 s{sWOr+3}, 0x20000
s_mov_b32 s{sW2+2}, {1792*1024}
s_mov_b32 s{sW2+3}, 0x20000
s_mov_b32 s{sB2+2}, 1024
s_mov_b32 s{sB2+3}, 0x20000
s_mov_b32 s{sGW+2}, 1024
s_mov_b32 s{sGW+3}, 0x20000
s_mov_b32 s{sOUT+2}, 0x200000
s_mov_b32 s{sOUT+3}, 0x20000
''')

def gen_tail(A, ld='sc1', wait_inputs=None):
    W = f's[{sWS}:{sWS+3}]'
    A(f'''
v_and_b32 v{vLane}, 63, v0
v_lshlrev_b32 v{vL16}, 4, v{vLane}
; vFr: fragment address in KX/VX/QX block: (n/16)*1024 + hh*256 + (n%16)*16   (+ a'*512 + blk*2048)
v_bfe_u32 v{vT0}, v{vLane}, 4, 1
v_lshlrev_b32 v{vFr}, 10, v{vT0}
v_lshrrev_b32 v{vT1}, 5, v{vLane}            ; hh
v_lshl_add_u32 v{vFr}, v{vT1}, 8, v{vFr}
v_and_b32 v{vT2}, 15, v{vLane}
v_lshl_add_u32 v{vFr}, v{vT2}, 4, v{vFr}
v_bfe_u32 v{vT3}, v{vLane}, 2, 2             ; r'
v_lshl_add_u32 v{vT3}, v{vT1}, 2, v{vT3}     ; 4hh + r'
v_lshlrev_b32 v{vTr}, 6, v{vT3}
v_lshl_add_u32 v{vTr}, v{vT0}, 5, v{vTr}
v_and_b32 v{vKw}, 3, v{vLane}
v_lshl_add_u32 v{vTr}, v{vKw}, 3, v{vTr}
; km staging: base = L_KM + wave*4096 ; write addr = j*16 + g*4 ; K read = (4hh+r')*16 + (c%2)*8 ; V read = 2048 + n*16 + hh*8
s_lshl_b32 s{sT0}, s{sWave}, 12
s_add_u32 s{sT0}, s{sT0}, {L_KM}
v_and_b32 v{vKr}, 1, v{vLane}
v_lshlrev_b32 v{vKr}, 3, v{vKr}
v_lshl_add_u32 v{vKr}, v{vT3}, 4, v{vKr}
v_add_u32 v{vKr}, s{sT0}, v{vKr}
v_lshrrev_b32 v{vKw}, 4, v{vLane}
v_lshlrev_b32 v{vKw}, 2, v{vKw}
v_lshl_add_u32 v{vKw}, v{vT2}, 4, v{vKw}
v_add_u32 v{vKw}, s{sT0}, v{vKw}
v_and_b32 v{vT2}, 31, v{vLane}               ; n
v_lshlrev_b32 v{vVr}, 4, v{vT2}
v_lshl_add_u32 v{vVr}, v{vT1}, 3, v{vVr}
s_and_b32 s{sT1}, s{sWave}, 1
s_lshl_b32 s{sT1}, s{sT1}, 10
s_add_u32 s{sT0}, s{sT0}, s{sT1}
s_add_u32 s{sT0}, s{sT0}, 2048
v_add_u32 v{vVr}, s{sT0}, v{vVr}
; reduce write: L_RED + wave*8192 + tok*128 + ((2a+hh) ^ (tok%8))*16 -> keep base without a; xor applied per a
v_and_b32 v{vT3}, 7, v{vLane}
v_xor_b32 v{vT3}, v{vT3}, v{vT1}
v_lshlrev_b32 v{vRw}, 4, v{vT3}
v_lshl_add_u32 v{vRw}, v{vT2}, 7, v{vRw}
s_lshl_b32 s{sT0}, s{sWave}, 13
s_add_u32 s{sT0}, s{sT0}, {L_RED}
v_add_u32 v{vRw}, s{sT0}, v{vRw}
; combine mapping: tok = tid/8, q = tid%8 ; read addr = L_RED + tok*128 + (q ^ (tok%8))*16
v_lshrrev_b32 v{vT0}, 3, v0
v_and_b32 v{vT3}, 7, v0
v_and_b32 v{vRr}, 7, v{vT0}
v_xor_b32 v{vRr}, v{vRr}, v{vT3}
v_lshlrev_b32 v{vRr}, 4, v{vRr}
v_lshl_add_u32 v{vRr}, v{vT0}, 7, v{vRr}
v_add_u32 v{vRr}, {L_RED}, v{vRr}
v_lshlrev_b32 v{vXg}, 10, v{vT0}
v_lshl_add_u32 v{vOut}, v{vT3}, 3, v{vXg}    ; tok*1024 + q*8
v_lshl_add_u32 v{vXg}, v{vT3}, 4, v{vXg}     ; tok*1024 + q*16
s_lshl_b32 s{sT0}, s{sCb}, 6
v_lshlrev_b32 v{vT3}, 3, v{vT3}
buffer_load_dwordx2 v[22:23], v{vT3}, s[{sB2}:{sB2+3}], s{sT0} offen
s_mov_b32 s{sCc}, {fbits((128 ** -0.5) * math.log2(math.e)):#x}
s_mov_b32 s{sNL2e}, {fbits(-math.log2(math.e)):#x}
s_lshr_b32 s{sHead}, s{sWave}, 1
s_lshl_b32 s{sT0}, s{sCb}, 1
s_add_u32 s{sHead}, s{sHead}, s{sT0}
s_mov_b32 s{sFail}, 0
v_lshlrev_b32 v{vT1}, 2, v{vT1}              ; 4hh
v_mov_b32 v{vT0}, {fbits(-1e30):#x}
''')
    for r in range(16):
        A(f'v_add_u32 v{vT3}, {8*(r//4) + r%4}, v{vT1}')
        A(f'v_cmp_gt_u32 vcc, v{vT3}, v{vT2}')
        A(f'v_cndmask_b32 v{MASK+r}, 0, v{vT0}, vcc')
    A('s_waitcnt vmcnt(0)')
    for i in range(2):
        A(f'v_lshlrev_b32 v{BI2+2*i}, 16, v{22+i}'); A(f'v_and_b32 v{BI2+2*i+1}, 0xffff0000, v{22+i}')
    A(f'''
s_barrier
v_lshrrev_b32 v{vT0}, 2, v{vLane}
v_lshlrev_b32 v{vT0}, 10, v{vT0}
v_and_b32 v{vT1}, 3, v{vLane}
v_lshl_add_u32 v{vT0}, v{vT1}, 4, v{vT0}
s_lshl_b32 s{sT0}, s{sCb}, 6
v_add_u32 v{vT0}, s{sT0}, v{vT0}
s_mul_i32 s{sLw}, s{sWave}, 40960
s_lshl_b32 s{sT2}, s{sWave}, 20
v_add_u32 v{vT1}, s{sLw}, v{vTr}
''')
    A.vmq = []; A.dsq = []
    def issue(i):
        for j in range(8):
            A(f's_add_u32 m0, s{sLw}, {(i % 5)*8192 + j*1024}')
            A(f's_add_u32 s{sT0}, s{sT2}, {(i*128 + j*16)*1024}')
            A(f'buffer_load_dwordx4 v{vT0}, s[{sWOr}:{sWOr+3}], s{sT0} offen lds', ('c', i))
    for i in range(5): issue(i)
    for i in range(8):
        A.wait_vm(('c', i))
        for fb in range(4):
            for ap in range(2):
                for q in range(2):
                    r = ((i*4 + fb)*2 + ap)*4 + 2*q
                    A(f'ds_read_b64_tr_b16 a[{r}:{r+1}], v{vT1} offset:{(i%5)*8192 + fb*2048 + (16*q + 8*ap)*64}', 't')
        A.wait_all(vm=False)
        if i + 5 < 8: issue(i + 5)
    A('s_barrier')
    A(f's_mul_i32 s{sLw}, s{sWave}, 28672')
    A(f's_mul_i32 s{sT2}, s{sWave}, {448*1024}')
    for j in range(28):
        A(f's_add_u32 m0, s{sLw}, {L_W2 + j*1024}')
        A(f's_add_u32 s{sT0}, s{sT2}, {j*16*1024}')
        A(f'buffer_load_dwordx4 v{vT0}, s[{sW2}:{sW2+3}], s{sT0} offen lds', 'w2')
    A(f'v_add_u32 v{vTr}, s{sLw}, v{vTr}')
    A(f's_mov_b32 s{sSeg}, s{sGrp}')
    A(f's_mov_b32 s{sCnt}, 0')
    A.label('L_tl_seg')
    A.vmq = []; A.dsq = []
    XR = 72; GR = 104
    A(f's_lshl_b32 s{sT0}, s{sSeg}, 15')
    A(f'v_and_b32 v{vT0}, 0x70, v{vXg}')
    for i in range(8):
        A(f'buffer_load_dwordx4 v[{XR+4*i}:{XR+4*i+3}], v{vXg}, s[{sX}:{sX+3}], s{sT0} offen offset:{i*128}', 'x')
        A(f'buffer_load_dwordx4 v[{GR+4*i}:{GR+4*i+3}], v{vT0}, s[{sGW}:{sGW+3}], 0 offen offset:{i*128}', 'x')
    A(f'v_mov_b32 v{vG}, 0')
    A('s_waitcnt vmcnt(0)'); A.vmq = []
    for i in range(32):
        A(f'v_lshlrev_b32 v{vT0}, 16, v{XR+i}'); A(f'v_and_b32 v{vT1}, 0xffff0000, v{XR+i}')
        A(f'v_lshlrev_b32 v{vT2}, 16, v{GR+i}'); A(f'v_and_b32 v{vT3}, 0xffff0000, v{GR+i}')
        A(f'v_mul_f32 v{vT0}, v{vT0}, v{vT2}'); A(f'v_mul_f32 v{vT1}, v{vT1}, v{vT3}')
        A(f'v_cvt_pk_bf16_f32 v{vT0}, v{vT0}, v{vT1}')
        A(f'v_lshlrev_b32 v{vT1}, 16, v{vT0}'); A(f'v_and_b32 v{vT0}, 0xffff0000, v{vT0}')
        A(f'v_add_f32 v{vG}, v{vG}, v{vT1}'); A(f'v_add_f32 v{vG}, v{vG}, v{vT0}')
    A(f'v_add_f32_dpp v{vG}, v{vG}, v{vG} quad_perm:[1,0,3,2] row_mask:0xf bank_mask:0xf')
    A(f'v_add_f32_dpp v{vG}, v{vG}, v{vG} quad_perm:[2,3,0,1] row_mask:0xf bank_mask:0xf')
    A(f'v_add_f32_dpp v{vG}, v{vG}, v{vG} row_half_mirror row_mask:0xf bank_mask:0xf')
    A(f'''
v_cvt_pk_bf16_f32 v{vG}, v{vG}, v{vG}
v_lshlrev_b32 v{vG}, 16, v{vG}
v_mul_f32 v{vG}, s{sNL2e}, v{vG}
v_exp_f32 v{vG}, v{vG}
v_add_f32 v{vG}, 1.0, v{vG}
v_rcp_f32 v{vG}, v{vG}
v_cvt_pk_bf16_f32 v{vG}, v{vG}, v{vG}
v_lshlrev_b32 v{vG}, 16, v{vG}
''')
    if wait_inputs: wait_inputs(A)
    A(f's_mul_i32 s{sT0}, s{sSeg}, {56*2048}')
    A(f's_add_u32 s{sT0}, s{sT0}, s{sLw}')
    A(f's_add_u32 s{sT0}, s{sT0}, {S.OFF_H}')
    for i in range(28):
        if i % 4 == 0 and i: A(f's_add_u32 s{sT0}, s{sT0}, 4096')
        A(f'buffer_load_dwordx4 v[{RING+4*i}:{RING+4*i+3}], v{vL16}, {W}, s{sT0} offen offset:{(i%4)*1024} {ld}', ('h', i))
    WF = [OT, OT + 4, OT + 8, OT + 12]
    def w2rd(i):
        fb, ap = i // 2, i % 2
        for q in range(2):
            A(f'ds_read_b64_tr_b16 v[{WF[i%4]+2*q}:{WF[i%4]+2*q+1}], v{vTr} offset:{L_W2 + fb*2048 + (16*q + 8*ap)*64}', ('wf', i))
    for i in range(3): w2rd(i)
    for i in range(28):
        if i + 3 < 28: w2rd(i + 3)
        A.wait_ds(('wf', i)); A.wait_vm(('h', i))
        c = '0' if i == 0 else f'v[{ACB}:{ACB+15}]'
        A(f'v_mfma_f32_32x32x16_bf16 v[{ACB}:{ACB+15}], v[{WF[i%4]}:{WF[i%4]+3}], v[{RING+4*i}:{RING+4*i+3}], {c}')
    A(f'''
s_lshl_b32 s{sT2}, s{sSeg}, 5
s_add_u32 s{sT2}, s{sT2}, s{sHead}
s_lshl_b32 s{sT1}, s{sT2}, 13                ; (s*32+h)*8192
''')
    for i in range(8):
        ks, ap = i // 2, i % 2
        if i % 4 == 0: A(f's_add_u32 s{sT0}, s{sT1}, {C.OFF_QX + (i//4)*4096}')
        A(f'buffer_load_dwordx4 v[{QF+4*i}:{QF+4*i+3}], v{vFr}, {W}, s{sT0} offen offset:{(ks%2)*2048 + ap*512} {ld}', ('q', i))
    for i in range(8):
        ks, ap = i // 2, i % 2
        if i % 4 == 0: A(f's_add_u32 s{sT0}, s{sT1}, {C.OFF_KX + (i//4)*4096}')
        A(f'buffer_load_dwordx4 v[{KF+4*i}:{KF+4*i+3}], v{vFr}, {W}, s{sT0} offen offset:{(ks%2)*2048 + ap*512} {ld}', ('k', i))
    A(f'''
s_and_b32 s{sT0}, s{sWave}, 1
s_lshl_b32 s{sT0}, s{sT0}, 12
s_add_u32 s{sT0}, s{sT0}, s{sT1}
s_add_u32 s{sT0}, s{sT0}, {C.OFF_VX}
''')
    for i in range(4):
        A(f'buffer_load_dwordx4 v[{VF+4*i}:{VF+4*i+3}], v{vFr}, {W}, s{sT0} offen offset:{(i//2)*2048 + (i%2)*512} {ld}', 'v')
    for i in range(8):
        A.wait_vm(('k', i))
        c = f'v[{MASK}:{MASK+15}]' if i == 0 else f'v[{SX}:{SX+15}]'
        A(f'v_mfma_f32_32x32x16_bf16 v[{SX}:{SX+15}], v[{KF+4*i}:{KF+4*i+3}], v[{QF+4*i}:{QF+4*i+3}], {c}')
    MX = vT0
    A(f'v_max3_f32 v{MX}, v{SX}, v{SX+1}, v{SX+2}')
    for i in range(3, 15, 2): A(f'v_max3_f32 v{MX}, v{MX}, v{SX+i}, v{SX+i+1}')
    A(f'v_max_f32 v{MX}, v{MX}, v{SX+15}')
    A(f'v_mov_b64 v[{VM+2}:{VM+3}], 0'); A(f'v_mov_b64 v[{VM+6}:{VM+7}], 0'); A(f'v_mov_b64 v[{PB+10}:{PB+11}], 0')
    A(f's_lshl_b32 s{sT0}, s{sT2}, 12')
    A(f's_add_u32 s{sT0}, s{sT0}, {C.OFF_KMVM}')
    A(f's_mov_b32 s{sSpin}, 0')
    A.label('L_tl_km')
    for i in range(4):
        A(f'buffer_load_dwordx4 v[{RAW+4*i}:{RAW+4*i+3}], v{vL16}, {W}, s{sT0} offen offset:{i*1024} sc1', 'raw')
    A(f's_add_u32 s{sSpin}, s{sSpin}, 1')
    A(f's_cmp_gt_u32 s{sSpin}, {SPIN_MAX}')
    A('s_cbranch_scc1 L_tl_kmok')
    A('s_waitcnt vmcnt(0)'); A.vmq = []
    A(f'v_max3_u32 v{vT1}, v{RAW}, v{RAW+1}, v{RAW+2}')
    for i in range(3, 15, 2): A(f'v_max3_u32 v{vT1}, v{vT1}, v{RAW+i}, v{RAW+i+1}')
    A(f'v_max_u32 v{vT1}, v{vT1}, v{RAW+15}')
    A(f'v_cmp_eq_u32 vcc, -1, v{vT1}')
    A('s_cbranch_vccz L_tl_kmok')
    A('s_sleep 4')
    A('s_branch L_tl_km')
    A.label('L_tl_kmok')
    A('s_waitcnt vmcnt(0)')
    for i in range(4):
        A(f'ds_write2_b32 v{vKw}, v{RAW+4*i}, v{RAW+4*i+1} offset0:{(i%2)*128} offset1:{(i%2)*128+64}' if i < 2 else
          f'ds_write2_b32 v{vT1}, v{RAW+4*i}, v{RAW+4*i+1} offset0:{(i%2)*128} offset1:{(i%2)*128+64}', 'kw')
        if i == 0: A(f'v_add_u32 v{vT1}, 1024, v{vKw}'); A(f'v_add_u32 v{vT2}, 2048, v{vKw}'); A(f'v_add_u32 v{vT3}, 3072, v{vKw}')
    for i in range(4):
        A(f'ds_write2_b32 v{vT2 if i < 2 else vT3}, v{RAW+4*i+2}, v{RAW+4*i+3} offset0:{(i%2)*128} offset1:{(i%2)*128+64}', 'kw')
    for i in range(8):
        ks, ap = i // 2, i % 2
        for q in range(2):
            A(f'ds_read_b64_tr_b16 v[{KF+4*i+2*q}:{KF+4*i+2*q+1}], v{vKr} offset:{(32*ks + 16*q + 8*ap)*16}', ('km', i))
    for fb in range(2):
        A(f'ds_read_b64 v[{VM+4*fb}:{VM+4*fb+1}], v{vVr} offset:{fb*512}', 'vm')
    for i in range(8):
        A.wait_ds(('km', i))
        c = '0' if i == 0 else f'v[{SM}:{SM+15}]'
        A(f'v_mfma_f32_32x32x16_bf16 v[{SM}:{SM+15}], v[{KF+4*i}:{KF+4*i+3}], v[{QF+4*i}:{QF+4*i+3}], {c}')
    A(f'v_max3_f32 v{MX}, v{MX}, v{SM}, v{SM+1}')
    A(f'v_max3_f32 v{MX}, v{MX}, v{SM+2}, v{SM+3}')
    A(f'v_mov_b32 v{vT1}, v{MX}')
    A(f'v_permlane32_swap_b32 v{MX}, v{vT1}')
    A(f'v_max_f32 v{MX}, v{MX}, v{vT1}')
    A(f'v_mul_f32 v{MX}, s{sCc}, v{MX}')
    vals = [SX + i for i in range(16)] + [SM + i for i in range(4)]
    for r in vals: A(f'v_fma_f32 v{r}, v{r}, s{sCc}, -v{MX}')
    for r in vals: A(f'v_exp_f32 v{r}, v{r}')
    for ap in range(2):
        idx = [4*ap + b for b in range(4)] + [4*ap + 8 + b for b in range(4)]
        for i in range(4): A(f'v_cvt_pk_bf16_f32 v{PB+4*ap+i}, v{SX+idx[2*i]}, v{SX+idx[2*i+1]}')
    A(f'v_cvt_pk_bf16_f32 v{PB+8}, v{SM}, v{SM+1}'); A(f'v_cvt_pk_bf16_f32 v{PB+9}, v{SM+2}, v{SM+3}')
    A.wait_ds('vm')
    for fb in range(2):
        d = OT + 16 * fb
        A(f'v_mfma_f32_32x32x16_bf16 v[{d}:{d+15}], v[{VF+8*fb}:{VF+8*fb+3}], v[{PB}:{PB+3}], 0')
        A(f'v_mfma_f32_32x32x16_bf16 v[{d}:{d+15}], v[{VF+8*fb+4}:{VF+8*fb+7}], v[{PB+4}:{PB+7}], v[{d}:{d+15}]')
        A(f'v_mfma_f32_32x32x16_bf16 v[{d}:{d+15}], v[{VM+4*fb}:{VM+4*fb+3}], v[{PB+8}:{PB+11}], v[{d}:{d+15}]')
    LS = vT1
    A(f'v_add_f32 v{LS}, v{vals[0]}, v{vals[1]}')
    for r in vals[2:]: A(f'v_add_f32 v{LS}, v{LS}, v{r}')
    A(f'v_mov_b32 v{vT2}, v{LS}')
    A(f'v_permlane32_swap_b32 v{LS}, v{vT2}')
    A(f'v_add_f32 v{LS}, v{LS}, v{vT2}')
    A(f'v_rcp_f32 v{LS}, v{LS}')
    A(f'''
s_and_b32 s{sT0}, s{sWave}, 1
s_lshl_b32 s{sT0}, s{sT0}, 12
s_add_u32 s{sT0}, s{sT0}, s{sT1}
s_add_u32 s{sT0}, s{sT0}, {OFF_O}
''')
    for fb in range(2):
        d = OT + 16 * fb
        for r in range(16): A(f'v_mul_f32 v{d+r}, v{d+r}, v{LS}')
        for ap in range(2):
            idx = [4*ap + b for b in range(4)] + [4*ap + 8 + b for b in range(4)]
            t = SX + 8 * fb + 4 * ap
            for i in range(4): A(f'v_cvt_pk_bf16_f32 v{t+i}, v{d+idx[2*i]}, v{d+idx[2*i+1]}')
            A(f'buffer_store_dwordx4 v[{t}:{t+3}], v{vL16}, {W}, s{sT0} offen offset:{fb*2048 + ap*1024}', 'o')
    def red_write(acc, which):
        for a in range(4):
            A(f'v_xor_b32 v{vT2}, {a*32}, v{vRw}')
            A(f'ds_write_b128 v{vT2}, v[{acc+4*a}:{acc+4*a+3}] offset:{which*4096}', 'rw')
    red_write(ACB, 1)
    A(f's_add_u32 s{sCnt}, s{sCnt}, 16')
    A(f's_lshl_b32 s{sT0}, s{sGrp}, 2')
    A(f's_add_u32 s{sT0}, s{sT0}, {DBG_GRP*4}')
    A(f'v_mov_b32 v{vT0}, s{sT0}')
    A(f'v_mov_b32 v{vT1}, 1')
    A('s_waitcnt vmcnt(0)'); A.vmq = []
    A('s_barrier')
    A(f's_cmp_lg_u32 s{sWave}, 0')
    A('s_cbranch_scc1 L_tl_nosig')
    A('s_mov_b64 exec, 1')
    A(f'buffer_atomic_add v{vT1}, v{vT0}, s[{sDBG}:{sDBG+3}], 0 offen')
    A('s_mov_b64 exec, -1')
    A(f's_mov_b32 s{sSpin}, 0')
    A.label('L_tl_gw')
    A(f'buffer_load_dword v{vT1}, v{vT0}, s[{sDBG}:{sDBG+3}], 0 offen sc1')
    A(f's_add_u32 s{sSpin}, s{sSpin}, 1')
    A(f's_cmp_gt_u32 s{sSpin}, {SPIN_MAX}')
    A('s_cbranch_scc1 L_tl_nosig')
    A('s_waitcnt vmcnt(0)')
    A(f'v_cmp_gt_u32 vcc, s{sCnt}, v{vT1}')
    A('s_cbranch_vccnz L_tl_gw')
    A.label('L_tl_nosig')
    A('s_waitcnt vmcnt(0)')
    A('s_barrier')
    A.vmq = []
    A(f'''
s_lshl_b32 s{sT0}, s{sSeg}, 18
s_lshl_b32 s{sT1}, s{sWave}, 16
s_add_u32 s{sT0}, s{sT0}, s{sT1}
s_add_u32 s{sT0}, s{sT0}, {OFF_O}
''')
    def oload(i):
        if i % 4 == 0 and i: A(f's_add_u32 s{sT0}, s{sT0}, 4096')
        r = RING + 4 * (i % 32)
        A(f'buffer_load_dwordx4 v[{r}:{r+3}], v{vL16}, {W}, s{sT0} offen offset:{(i%4)*1024} sc1', ('o', i))
    for i in range(32): oload(i)
    for i in range(64):
        A.wait_vm(('o', i))
        r = RING + 4 * (i % 32)
        c = '0' if i == 0 else f'v[{ACA}:{ACA+15}]'
        A(f'v_mfma_f32_32x32x16_bf16 v[{ACA}:{ACA+15}], a[{4*i}:{4*i+3}], v[{r}:{r+3}], {c}')
        if i >= 1 and i + 31 < 64: oload(i + 31)
    red_write(ACA, 0)
    A.wait_all(vm=False)
    A('s_barrier')
    R0 = 72
    for wv in range(4):
        for which in range(2):
            r = R0 + (which * 4 + wv) * 4
            A(f'ds_read_b128 v[{r}:{r+3}], v{vRr} offset:{wv*8192 + which*4096}', 'rr')
    A.wait_all(vm=False)
    A('s_barrier')
    for which in range(2):
        b = R0 + which * 16
        for i in range(4):
            A(f'v_add_f32 v{b+i}, v{b+i}, v{b+4+i}'); A(f'v_add_f32 v{b+8+i}, v{b+8+i}, v{b+12+i}'); A(f'v_add_f32 v{b+i}, v{b+i}, v{b+8+i}')
    def rnd(b):
        for i in range(2):
            A(f'v_cvt_pk_bf16_f32 v{vT0}, v{b+2*i}, v{b+2*i+1}')
            A(f'v_lshlrev_b32 v{b+2*i}, 16, v{vT0}'); A(f'v_and_b32 v{b+2*i+1}, 0xffff0000, v{vT0}')
    a0 = R0; b0 = R0 + 16
    rnd(a0); rnd(b0)
    for i in range(4): A(f'v_add_f32 v{b0+i}, v{b0+i}, v{BI2+i}')
    rnd(b0)
    A(f'v_sub_f32 v{vT1}, 1.0, v{vG}')
    A(f'v_cvt_pk_bf16_f32 v{vT1}, v{vT1}, v{vT1}')
    A(f'v_lshlrev_b32 v{vT1}, 16, v{vT1}')
    for i in range(4):
        A(f'v_mul_f32 v{a0+i}, v{a0+i}, v{vG}'); A(f'v_mul_f32 v{b0+i}, v{b0+i}, v{vT1}')
    rnd(a0); rnd(b0)
    for i in range(4): A(f'v_add_f32 v{a0+i}, v{a0+i}, v{b0+i}')
    A(f'v_cvt_pk_bf16_f32 v{a0}, v{a0}, v{a0+1}'); A(f'v_cvt_pk_bf16_f32 v{a0+1}, v{a0+2}, v{a0+3}')
    A(f's_lshl_b32 s{sT0}, s{sSeg}, 15')
    A(f's_lshl_b32 s{sT1}, s{sCb}, 6')
    A(f's_add_u32 s{sT0}, s{sT0}, s{sT1}')
    A(f'buffer_store_dwordx2 v[{a0}:{a0+1}], v{vOut}, s[{sOUT}:{sOUT+3}], s{sT0} offen')
    A(f's_add_u32 s{sSeg}, s{sSeg}, s{sNG}')
    A(f's_cmp_lt_u32 s{sSeg}, 64')
    A('s_cbranch_scc1 L_tl_seg')

def rank_election(A, lbl, sRank, sXcc=3):
    A(f'''
s_cmp_lg_u32 s{sWave}, 0
s_cbranch_scc1 L_{lbl}_norank
s_lshl_b32 s{sRank}, s{sXcc}, 2
v_mov_b32 v2, s{sRank}
v_mov_b32 v3, 1
s_mov_b64 exec, 1
buffer_atomic_add v3, v2, s[{sDBG}:{sDBG+3}], 0 offen sc0
s_waitcnt vmcnt(0)
s_mov_b64 exec, -1
v_readfirstlane_b32 s{sRank}, v3
v_lshlrev_b32 v2, 13, v0
v_mov_b32 v3, s{sRank}
s_mov_b64 exec, 15
ds_write_b32 v2, v3
s_mov_b64 exec, -1
s_waitcnt lgkmcnt(0)
L_{lbl}_norank:
s_barrier
v_lshrrev_b32 v2, 6, v0
v_lshlrev_b32 v2, 13, v2
ds_read_b32 v3, v2
s_waitcnt lgkmcnt(0)
v_readfirstlane_b32 s{sRank}, v3
s_nop 3
''')
    A.dsq = []; A.vmq = []

def gen_kernel(A, name='tail_kernel'):
    A.raw(f'.globl {name}\n.p2align 8\n.type {name},@function\n{name}:')
    A(f'''
s_cmp_ge_u32 s2, 256
s_cbranch_scc1 L_tl_end
s_load_dwordx2 s[{sWS}:{sWS+1}], s[0:1], 120
s_load_dwordx2 s[{sDBG}:{sDBG+1}], s[0:1], 112
s_load_dwordx2 s[{sX}:{sX+1}], s[0:1], 0
s_getreg_b32 s3, hwreg(HW_REG_XCC_ID)
s_and_b32 s3, s3, 7
v_lshrrev_b32 v1, 6, v0
s_mov_b32 s{sWS+2}, {C.WS_BYTES}
s_mov_b32 s{sWS+3}, 0x20000
s_mov_b32 s{sDBG+2}, 256
s_mov_b32 s{sDBG+3}, 0x20000
s_mov_b32 s{sX+2}, 0x200000
s_mov_b32 s{sX+3}, 0x20000
v_readfirstlane_b32 s{sWave}, v1
''')
    load_args(A)
    A('s_waitcnt lgkmcnt(0)')
    rank_election(A, 'tl', sT0)
    A(f'''
s_cmp_ge_u32 s{sT0}, 32
s_cbranch_scc1 L_tl_end
s_and_b32 s{sCb}, s{sT0}, 15
s_lshr_b32 s{sGrp}, s{sT0}, 4
s_lshl_b32 s{sT1}, s3, 1
s_add_u32 s{sGrp}, s{sGrp}, s{sT1}
s_mov_b32 s{sNG}, 16
''')
    gen_tail(A)
    A('s_waitcnt vmcnt(0)')
    A.label('L_tl_end')
    A('s_endpgm')
```

```python
import sys
from asmlib import Asm
import chain as C, stagea as S, tail as T
HDR = open('gated_mix__memory_aug_recurrent_mem_tr__dense_activation_squared_relu__prompt.s.ref').read().split('; Override launch')[0]
def gen():
    C.NO_PF = 1; C.G_DELAY = 8; C.RED_DELAY = 2
    A = Asm()
    A.raw(HDR.rstrip())
    for k in ('stagea_kernel', 'chain_kernel', 'tail_kernel'):
        A.raw(f'; @launch kernel={k} grid=(256,1,1) block=(256,1,1) lds=163840')
    A.raw('.amdgcn_target "amdgcn-amd-amdhsa--gfx950"\n.text')
    S.gen_kernel(A)
    body = C.gen_standalone()
    a = body.index('.globl chain_kernel'); b = body.index('.section .rodata')
    A.raw(body[a:b].rstrip())
    T.gen_kernel(A)
    A.raw('.section .rodata,"a"')
    for k in ('stagea_kernel', 'chain_kernel', 'tail_kernel'):
        A.raw('.p2align 6\n' + S.KD.format(name=k))
    return A.text()
if __name__ == '__main__':
    open(sys.argv[1], 'w').write(gen())
```

```python
import struct, math
from asmlib import Asm, vr

OFF_PART = 0x100000
OFF_MEM  = 0x200000
OFF_KMVM = 0x400000
OFF_KX   = 0x1000000
OFF_VX   = 0x2000000
OFF_QX   = 0x3000000
OFF_TIM  = 0x300000
WS_BYTES = 0x10000000
L_MEM = 0
L_KX = 8192
L_VX = 16384
L_D = 24576
L_K = 26624
L_O = 30720
L_W = 32768
DBG_RANK0 = 0
DBG_READY = 8
DBG_KV = 9
DBG_QH = 17
SPIN_MAX = 200000

def fbits(x): return struct.unpack('<I', struct.pack('<f', x))[0]

sWS, sDBG = 4, 8
sCk = 12
sWave, sH, sStep, sT0, sT1, sSpin = 16, 17, 18, 19, 20, 21
sPartSt0, sPartSt1, sRed, sRst, sGat, sPub, sPubRst = 22, 23, 24, 26, 27, 28, 29
sKXd, sVXd, sPf, sKM, sC = 30, 31, 32, 33, 34
sA = [36, 37, 38, 39]
sGatB, sRedB, sPubB = 40, 41, 43
sPf2, sPfInc, sPfEx = 25, 35, 100
sOnes = 44
sRt, sRt0 = 46, 48
sVal = 50
sWQ, sWK, sWV, sWO, sM0 = 52, 56, 60, 64, 68
sMask = [72, 74, 76, 78]
sMKX, sMVX, sHb, sWb, sFail = 81, 82, 83, 84, 85
NST = 10
sSt = 52
sAcc = 86
sPg, sPr, sThr, sLast = 96, 97, 98, 99
THR = 30.0
RDEPTH = 3
RED_DELAY = 0
G_DELAY = 0
G_GAP = 4
DIAG = 0
NO_PF = 0
NO_KM = 0
KVINC = 262144
KMINC = 131072
PFMODE = 0
LIGHT = 0
NCU = 32
NOHOP = 0
DROP = ()
KVF = ''
KMF = ''
vWl, vXl, vIdx, vPst, vQr, vMw, vQw, vPub, vOw, vOr, vPf, vSel = range(12)
vGat = vRed = vXl
vT = [12, 13, 14, 15]
MEM = 16; WBA = 48; WBB = 56; QT = 64; KXB = 80; AQ = 96; AK = 104; AV = 112; KV = 120; PM = 124

def build_frag_map():
    lds_chunks = [('v', 0), ('q', 3), ('k', 3), ('o', 0)]
    allc = [(m, a) for m in 'qkvo' for a in range(4)]
    regc = [c for c in allc if c not in lds_chunks]
    loc = {}
    slot = 0
    def frs(c):
        m, a = c
        if m == 'o': return [(m, 2*a + tau, tt, tau, tt) for tt in range(2) for tau in range(2)]
        return [(m, tau, 2*a + tt, tau, tt) for tt in range(2) for tau in range(2)]
    for c in regc:
        for (m, tile, t, tau, tt) in frs(c):
            if slot < 32: loc[(m, tile, t)] = ('a', slot * 8)
            else: loc[(m, tile, t)] = ('v', 128 + (slot - 32) * 8)
            slot += 1
    assert slot == 48
    li = 0
    for c in lds_chunks:
        for (m, tile, t, tau, tt) in frs(c):
            loc[(m, tile, t)] = ('l', li); li += 1
    return regc + lds_chunks, loc, frs

def gen_chain(A, timing=False, kv_flags='', nsteps=64, mega=False):
    chunks, loc, frs = build_frag_map()
    W = f's[{sWS}:{sWS+3}]'
    def stamp(i, force=False):
        if LIGHT: return
        if DIAG and not force:
            if 1 <= i <= 7: return
            if i == 8: i = 1
        if timing: A(f's_memtime s[{sSt+2*i}:{sSt+2*i+1}]')
    def E(x):
        if isinstance(x, tuple):
            tg = x[1][0] if isinstance(x[1], tuple) else x[1]
            if tg in DROP: return
            A(x[0], x[1])
        elif callable(x): x()
        else: A(x)
    def EL(l):
        for x in l: E(x)
    A(f'''
v_and_b32 v127, 63, v0                       ; lane
v_and_b32 v126, 15, v127                     ; j / i / n
v_lshrrev_b32 v125, 4, v127                  ; g
v_lshlrev_b32 v{vXl}, 4, v127                ; lane*16
s_lshl_b32 s{sWb}, s{sWave}, 15
s_add_u32 s{sWb}, s{sWb}, {L_W}
v_add_u32 v{vWl}, s{sWb}, v{vXl}
s_lshl_b32 s{sT0}, s{sWave}, 11
v_add_u32 v{vMw}, s{sT0}, v{vXl}
s_lshl_b32 s{sHb}, s{sH}, 13                 ; h*8192
s_add_u32 s{sGatB}, s{sT0}, {OFF_MEM}
s_add_u32 s{sRedB}, s{sHb}, s{sT0}
s_add_u32 s{sRedB}, s{sRedB}, {OFF_PART}
s_lshl_b32 s{sT0}, s{sH}, 6
s_add_u32 s{sPubB}, s{sT0}, s{sGatB}
v_and_b32 v121, 1, v127                      ; bit0
v_bfe_u32 v122, v127, 1, 1                   ; bit1
v_bfe_u32 v123, v127, 2, 1                   ; bit2
v_bfe_u32 v124, v127, 3, 1                   ; bit3
v_and_b32 v120, 3, v127
v_bfe_u32 v116, v127, 4, 1
v_bfe_u32 v115, v127, 5, 1
v_lshlrev_b32 v{vPub}, 5, v122
v_lshl_add_u32 v{vPub}, v115, 4, v{vPub}
v_lshl_add_u32 v{vPub}, v121, 3, v{vPub}
v_lshl_add_u32 v{vPub}, v116, 2, v{vPub}
v_mov_b32 v64, -1
v_mov_b32 v65, -1
v_mov_b32 v66, -1
v_mov_b32 v67, -1
''')
    for sl in range(4):
        if sl < 2:
            A(f's_add_u32 s{sT0}, s{sRedB}, {sl << 18}')
            A(f'buffer_store_dwordx4 v[64:67], v{vXl}, {W}, s{sT0} offen', 'rst')
            A(f'buffer_store_dwordx4 v[64:67], v{vXl}, {W}, s{sT0} offen offset:1024', 'rst')
        A(f's_add_u32 s{sT0}, s{sPubB}, {sl << 13}')
        A(f'buffer_store_dword v64, v{vPub}, {W}, s{sT0} offen', 'rst')
    A(f'''
v_mov_b32 v119, 0x4444
v_mov_b32 v118, 0xeeee
v_cmp_eq_u32 s[{sVal}:{sVal+1}], 1, v122
v_cndmask_b32 v{vIdx}, v119, v118, s[{sVal}:{sVal+1}]
v_lshrrev_b32 v119, 2, v126
; vPst = (8w + 4jh + g)*8192 + h*64 + (j%8)*8
v_lshl_add_u32 v118, v124, 2, v125
v_lshlrev_b32 v118, 13, v118
v_and_b32 v117, 7, v127
v_lshl_add_u32 v118, v117, 3, v118
s_lshl_b32 s{sT0}, s{sWave}, 16
s_lshl_b32 s{sT1}, s{sH}, 6
s_add_u32 s{sT0}, s{sT0}, s{sT1}
v_add_u32 v{vPst}, s{sT0}, v118
v_lshrrev_b32 v{vQr}, 1, v{vXl}
v_lshlrev_b32 v{vPf}, 3, v{vXl}
v_lshl_add_u32 v118, v119, 1, v121
v_lshlrev_b32 v118, 4, v118
v_lshl_add_u32 v117, v125, 1, v122
v_lshl_add_u32 v117, v117, 7, v118
v_add_u32 v{vOr}, {L_O}, v117
v_lshl_add_u32 v117, v125, 7, v118
s_lshl_b32 s{sT0}, s{sWave}, 9
v_add_u32 v117, s{sT0}, v117
v_mov_b32 v116, {L_D}
v_mov_b32 v115, {L_O}
v_cndmask_b32 v116, v116, v115, s[{sVal}:{sVal+1}]
v_add_u32 v{vOw}, v116, v117
; vQw = L_K + (32w + j)*32 + g*8
v_lshlrev_b32 v117, 5, v126
v_lshl_add_u32 v117, v125, 3, v117
s_lshl_b32 s{sT0}, s{sWave}, 10
s_add_u32 s{sT0}, s{sT0}, {L_K}
v_add_u32 v{vQw}, s{sT0}, v117
v_mov_b32 v117, 0x3f80
v_mov_b32 v116, 0x3f800000
v_cmp_eq_u32 vcc, 1, v124
v_cndmask_b32 v{vSel}, v117, v116, vcc
v_lshl_add_u32 v117, v123, 1, v120
v_lshl_add_u32 v117, v122, 3, v117
s_mov_b32 s{sThr}, {fbits(THR):#x}
s_mov_b32 s{sC}, {fbits((128 ** -0.5) * math.log2(math.e)):#x}
s_mov_b32 s{sOnes}, 0x3f803f80
s_mov_b32 s{sOnes+1}, 0x3f803f80
''')
    for k in range(4):
        A(f'v_cmp_eq_u32 s[{sMask[k]}:{sMask[k]+1}], {k}, v117')
    A(f'''
v_bfe_u32 v116, v127, 4, 1                   ; gB%2
v_bfe_u32 v115, v127, 5, 1                   ; gB/2
v_lshlrev_b32 v113, 1, v116
v_xor_b32 v114, v120, v113                   ; piece
; qkv: d_lane = 16b + 8(gB/2) + 4half + 2(gB%2)      (b = bit2, half = bit3)
v_lshlrev_b32 v112, 4, v123
v_lshl_add_u32 v112, v115, 3, v112
v_lshl_add_u32 v112, v124, 2, v112
v_lshl_add_u32 v112, v116, 1, v112
v_lshlrev_b32 v112, 13, v112
v_lshl_add_u32 v112, v114, 4, v112
s_lshl_b32 s{sT0}, s{sH}, 8
s_lshl_b32 s{sT1}, s{sWave}, 6
s_add_u32 s{sT0}, s{sT0}, s{sT1}
v_add_u32 v112, s{sT0}, v112
; o: e_lane = 16(gB%2) + 8(gB/2) + 4half + b
v_lshlrev_b32 v111, 4, v116
v_lshl_add_u32 v111, v115, 3, v111
v_lshl_add_u32 v111, v124, 2, v111
v_add_u32 v111, v111, v123
v_lshlrev_b32 v111, 10, v111
v_lshl_add_u32 v111, v114, 4, v111
s_lshl_b32 s{sT0}, s{sH}, 17
s_lshl_b32 s{sT1}, s{sWave}, 8
s_add_u32 s{sT0}, s{sT0}, s{sT1}
v_add_u32 v111, s{sT0}, v111
; tr-read lane address: gB*256 + r'*64 + ((tau^(gB%2))*32) + c*8
v_lshrrev_b32 v110, 2, v127
v_lshlrev_b32 v110, 6, v110
v_lshl_add_u32 v110, v120, 3, v110
v_lshl_add_u32 v110, v116, 5, v110           ; tau=0
v_xor_b32 v109, 32, v110                     ; tau=1
s_lshl_b32 s{sMKX}, s{sWave}, 13
v_add_u32 v108, s{sMKX}, v110
v_add_u32 v107, s{sMKX}, v109
v_add_u32 v110, s{sWb}, v110
v_add_u32 v109, s{sWb}, v109
''')
    for a in range(4):
        A(f's_xor_b32 s{sA[a]}, s{sWave}, {a}')
        A(f's_lshl_b32 s{sA[a]}, s{sA[a]}, 18')
    srd = {'q': sWQ, 'k': sWK, 'v': sWV, 'o': sWO}
    def slot_of(i): return (i + 3) % 5
    def issue_chunk(i):
        m, a = chunks[i]; sl = slot_of(i)
        for j in range(8):
            tt, hi, qq = j >> 2, (j >> 1) & 1, j & 1
            if sl < 4: A(f's_add_u32 m0, s{sWb}, {sl*8192 + j*1024}')
            else: A(f's_add_u32 m0, s{sMKX}, {j*1024}')
            if m == 'o':
                A(f's_mov_b32 s{sT0}, {(64*tt + 32*hi + 2*qq)*1024 + a*64}')
                A(f'buffer_load_dwordx4 v111, s[{srd[m]}:{srd[m]+3}], s{sT0} offen lds', ('ch', i))
            else:
                A(f's_add_u32 s{sT0}, s{sA[a]}, {(256*tt + 128*hi + qq)*8192}')
                A(f'buffer_load_dwordx4 v112, s[{srd[m]}:{srd[m]+3}], s{sT0} offen lds', ('ch', i))
    for i in range(5): issue_chunk(i)
    for i in range(16):
        A.wait_vm(('ch', i))
        if i == 0:
            A(f'v_mov_b32 v106, {DBG_READY*4}\nv_mov_b32 v105, 1\ns_mov_b64 exec, 1')
            A(f'buffer_atomic_add v105, v106, s[{sDBG}:{sDBG+3}], 0 offen', 'sig')
            A('s_mov_b64 exec, -1')
        sl = slot_of(i)
        fl = frs(chunks[i])
        for n, (m, tile, t, tau, tt) in enumerate(fl):
            kind, base = loc[(m, tile, t)]
            if kind == 'l': f, b0 = 'v', 16 + n * 8
            else: f, b0 = kind, base
            for rho in range(4):
                j = tt * 4 + rho
                if sl < 4: addr, off = (110 if tau == 0 else 109), sl * 8192 + j * 1024
                else: addr, off = (108 if tau == 0 else 107), j * 1024
                A(f'ds_read_b64_tr_b16 {f}[{b0+2*rho}:{b0+2*rho+1}], v{addr} offset:{off}', 'tr')
        A.wait_all(vm=False)
        if i + 5 < 16: issue_chunk(i + 5)
        if i >= 12:
            for n, (m, tile, t, tau, tt) in enumerate(fl):
                li = loc[(m, tile, t)][1]
                assert li // 4 == sl
                for hh in range(2):
                    A(f'ds_write_b128 v{vWl}, v[{16+n*8+4*hh}:{16+n*8+4*hh+3}] offset:{li*2048 + hh*1024}', 'w')
            A.wait_all(vm=False)
    A('s_barrier')
    A(f'''
s_lshl_b32 s{sT0}, s{sWave}, 11
s_add_u32 s{sMKX}, s{sT0}, {L_KX}
s_add_u32 s{sMVX}, s{sT0}, {L_VX}
s_add_u32 s{sT0}, s{sT0}, s{sHb}
s_add_u32 s{sKXd}, s{sT0}, {OFF_KX}
s_add_u32 s{sVXd}, s{sT0}, {OFF_VX}
s_and_b32 s{sT0}, s{sWave}, 1
s_lshl_b32 s{sT0}, s{sT0}, 12
s_add_u32 s{sT0}, s{sT0}, s{sHb}
s_lshr_b32 s{sT1}, s{sWave}, 1
s_lshl_b32 s{sT1}, s{sT1}, 24
s_add_u32 s{sT0}, s{sT0}, s{sT1}
s_add_u32 s{sPf}, s{sT0}, {OFF_KX + 2*262144}
s_lshl_b32 s{sT0}, s{sH}, 12
s_lshl_b32 s{sT1}, s{sWave}, 10
s_add_u32 s{sT0}, s{sT0}, s{sT1}
s_add_u32 s{sKM}, s{sT0}, {OFF_KMVM}
s_mov_b32 s{sFail}, 0
s_mov_b32 s{sPfInc}, {KVINC}
s_mov_b32 s{sPfEx}, -1
s_mov_b32 s{sPfEx+1}, 0
''')
    if PFMODE == 2:
        A(f'''
s_add_u32 s{sPf}, s{sHb}, {OFF_KX + 2*262144}
s_add_u32 s{sPf2}, s{sHb}, {OFF_VX + 2*262144}
s_mov_b32 s{sPfEx+1}, -1
s_cmp_eq_u32 s{sWave}, 0
s_cbranch_scc1 L_ch_pfw0
s_mov_b32 s{sPf}, s{sRedB}
s_mov_b32 s{sPf2}, s{sRedB}
s_mov_b32 s{sPfInc}, 0
s_mov_b32 s{sPfEx}, 1
s_mov_b32 s{sPfEx+1}, 0
L_ch_pfw0:
''')
    dkx = [(f'buffer_load_dwordx4 v{vXl}, {W}, s{sKXd} offen {kv_flags} {KVF} lds', 'dkx0'),
           (f'buffer_load_dwordx4 v{vXl}, {W}, s{sKXd} offen offset:1024 {kv_flags} {KVF} lds', 'dkx'), f's_add_u32 s{sKXd}, s{sKXd}, {KVINC}']
    dvx = [(f'buffer_load_dwordx4 v{vXl}, {W}, s{sVXd} offen {kv_flags} {KVF} lds', 'dvx'),
           (f'buffer_load_dwordx4 v{vXl}, {W}, s{sVXd} offen offset:1024 {kv_flags} {KVF} lds', 'dvx'), f's_add_u32 s{sVXd}, s{sVXd}, {KVINC}']
    def wait_kv(lbl, first, n, va, vb):
        A(f'v_lshrrev_b32 v{va}, 2, v{vXl}')
        A(f's_mov_b32 s{sSpin}, 0')
        A(f's_mov_b64 exec, {(1 << n) - 1}')
        A.label(lbl)
        A(f'buffer_load_dword v{vb}, v{va}, s[{sDBG}:{sDBG+3}], 0 offen offset:{(DBG_KV + first)*4} sc1')
        A(f's_add_u32 s{sSpin}, s{sSpin}, 1')
        A(f's_cmp_gt_u32 s{sSpin}, {SPIN_MAX}')
        A(f's_cbranch_scc1 {lbl}_x')
        A('s_waitcnt vmcnt(0)')
        A(f'v_cmp_gt_u32 vcc, 32, v{vb}')
        A(f's_cbranch_vccz {lbl}_x')
        A('s_sleep 8')
        A(f's_branch {lbl}')
        A.label(lbl + '_x')
        A('s_waitcnt vmcnt(0)')
        A('s_mov_b64 exec, -1')
        A.vmq = []
    if mega:
        if timing: A(f's_memrealtime s[{sSt+4}:{sSt+5}]'); A('s_waitcnt lgkmcnt(0)'); A(f's_sub_u32 s{sLast}, s{sSt+4}, s{sRt0}')
        wait_kv('L_ch_wkv', 0, 7, 105, 106)
    A(f's_mov_b32 m0, s{sMKX}'); EL(dkx)
    A(f's_mov_b32 m0, s{sMVX}'); EL(dvx)
    A(f'''
v_lshlrev_b32 v100, 10, v115
v_lshl_add_u32 v100, v120, 2, v100
v_lshl_add_u32 v100, v116, 1, v100
s_and_b32 s{sT0}, s{sH}, 3
s_lshl_b32 s{sT0}, s{sT0}, 11
s_lshr_b32 s{sT1}, s{sH}, 3
s_lshl_b32 s{sT1}, s{sT1}, 8
s_add_u32 s{sT0}, s{sT0}, s{sT1}
s_and_b32 s{sT1}, s{sH}, 4
s_lshl_b32 s{sT1}, s{sT1}, 2
s_add_u32 s{sT0}, s{sT0}, s{sT1}
s_lshl_b32 s{sT1}, s{sWave}, 6
s_add_u32 s{sT0}, s{sT0}, s{sT1}
''')
    A(f'buffer_load_ushort v101, v100, s[{sM0}:{sM0+3}], s{sT0} offen', 'm0')
    A(f'buffer_load_ushort v102, v100, s[{sM0}:{sM0+3}], s{sT0} offen offset:32', 'm0')
    A(f'v_mov_b32 v106, {DBG_READY*4}')
    A(f's_mov_b32 s{sSpin}, 0')
    A.label('L_ch_rdy')
    A(f'buffer_load_dword v105, v106, s[{sDBG}:{sDBG+3}], 0 offen sc1', 'rdy')
    A(f's_add_u32 s{sSpin}, s{sSpin}, 1')
    A(f's_cmp_gt_u32 s{sSpin}, {SPIN_MAX}')
    A('s_cbranch_scc1 L_ch_fail')
    A.wait_all(ds=False)
    A('v_cmp_gt_u32 vcc, 128, v105')
    if not NOHOP: A('s_cbranch_vccnz L_ch_rdy')
    A('v_lshl_or_b32 v101, v102, 16, v101')
    A(f'buffer_store_dword v101, v{vPub}, {W}, s{sPubB} offen')
    A(f'v_mov_b32 v{PM+1}, 0\nv_mov_b32 v{PM+2}, 0\ns_mov_b32 s{sStep}, 0')

    def wop(m, tile, t, buf=None):
        kind, base = loc[(m, tile, t)]
        if kind == 'l':
            assert buf is not None, (m, tile, t)
            return f'v[{buf}:{buf+7}]'
        return f'{kind}[{base}:{base+7}]'
    def ldw_i(m, tile, t, buf):
        kind, li = loc[(m, tile, t)]; assert kind == 'l'
        return [(f'ds_read_b128 v[{buf}:{buf+3}], v{vWl} offset:{li*2048}', ('w', buf)),
                (f'ds_read_b128 v[{buf+4}:{buf+7}], v{vWl} offset:{li*2048+1024}', ('w', buf))]
    acc = {'q': AQ, 'k': AK, 'v': AV}
    def sm(m, tile, t, buf=None):
        if buf is not None: A.wait_ds(('w', buf))
        if t >= 2: A.wait_ds(('mem', t))
        d = acc[m] + 4 * tile
        A(f'v_smfmac_f32_16x16x64_bf16 v[{d}:{d+3}], v[{MEM+4*t}:{MEM+4*t+3}], {wop(m, tile, t, buf)}, v{vIdx}')
    def memrd(t):
        return (f'ds_read_b128 v[{MEM+4*t}:{MEM+4*t+3}], v{vT[t//2-1]} offset:{L_MEM + (t&1)*1024}', ('mem', t))
    def kxrd2(kt, ks):
        b = (KXB if kt == 0 else WBA) + 4 * ks
        return (f'ds_read_b128 v[{b}:{b+3}], v{vXl} offset:{L_KX + (2*ks+kt)*1024}', ('kx', kt, ks))
    def pre_w():
        EL(ldw_i('v', 0, 0, WBA) + ldw_i('v', 1, 0, WBB) + ldw_i('q', 0, 6, QT) + ldw_i('q', 1, 6, QT + 8))
        EL([kxrd2(0, ks) for ks in range(4)])
    def pre_zero(lo, hi):
        for r in range(lo, hi, 2): A(f'v_mov_b64 v[{r}:{r+1}], 0')
    def pre_addr():
        for a in (1, 2, 3): A(f'v_xor_b32 v{vT[a-1]}, {a << 11}, v{vMw}')
    sc = [f's_and_b32 s{sT0}, s{sStep}, 1', f's_lshl_b32 s{sT1}, s{sT0}, 18',
          f's_add_u32 s{sPartSt0}, s{sT1}, {OFF_PART}', f's_add_u32 s{sPartSt1}, s{sT1}, {OFF_PART + 4096}',
          f's_add_u32 s{sRed}, s{sT1}, s{sRedB}',
          f's_xor_b32 s{sT1}, s{sT1}, {1 << 18}', f's_add_u32 s{sRst}, s{sT1}, s{sRedB}',
          f's_add_u32 s{sT0}, s{sStep}, 3', f's_and_b32 s{sT0}, s{sT0}, 3',
          f's_lshl_b32 s{sPubRst}, s{sT0}, 13', f's_add_u32 s{sPubRst}, s{sPubRst}, s{sPubB}',
          f's_add_u32 s{sT0}, s{sStep}, 1', f's_and_b32 s{sT0}, s{sT0}, 3', f's_lshl_b32 s{sT0}, s{sT0}, 13',
          f's_add_u32 s{sPub}, s{sT0}, s{sPubB}', f's_add_u32 s{sGat}, s{sT0}, s{sGatB}']
    A(f's_mov_b32 s{sGat}, s{sGatB}')
    A.wait_all(ds=False)
    A('s_barrier')
    pre_w(); pre_zero(AQ, AV + 8); pre_addr()
    if timing:
        for i in range(NST): A(f's_mov_b32 s{sAcc+i}, 0')
        A(f's_memtime s[{sSt}:{sSt+1}]'); A('s_waitcnt lgkmcnt(0)')
        for i in range(1, NST): A(f's_mov_b32 s{sSt+2*i}, s{sSt}')
        A(f's_mov_b32 s{sPg}, 0'); A(f's_mov_b32 s{sPr}, 0')
        A(f's_memrealtime s[{sRt}:{sRt+1}]'); A('s_waitcnt lgkmcnt(0)')
    A.label('L_ch_step')
    A.dsq = []; A.vmq = []
    def gload():
        A(f'buffer_load_dwordx4 v[{MEM}:{MEM+3}], v{vGat}, {W}, s{sGat} offen sc1', 'g')
        A(f'buffer_load_dwordx4 v[{MEM+4}:{MEM+7}], v{vGat}, {W}, s{sGat} offen offset:1024 sc1', 'g')
    for _ in range(G_DELAY): A('s_nop 3')
    gload()
    A(f'v_mov_b64 v[{AV}:{AV+1}], 0'); A(f'v_mov_b64 v[{AV+2}:{AV+3}], 0')
    A(f's_mov_b32 s{sSpin}, 0')
    A('s_waitcnt lgkmcnt(0)')
    if timing and not LIGHT:
        for i in range(NST - 1):
            A(f's_sub_u32 s{sT0}, s{sSt+2*(i+1)}, s{sSt+2*i}'); A(f's_add_u32 s{sAcc+i}, s{sAcc+i}, s{sT0}')
        A(f's_mov_b32 s{sLast}, s{sSt+2*(NST-1)}')
    else:
        for _ in range(G_GAP): A('s_nop 3')
    A.label('L_ch_g')
    gload()
    A(f's_add_u32 s{sSpin}, s{sSpin}, 1')
    A(f's_cmp_gt_u32 s{sSpin}, {SPIN_MAX}')
    A('s_cbranch_scc1 L_ch_fail')
    A('s_waitcnt vmcnt(2)')
    A(f'v_cmp_u_f32 vcc, v{MEM}, v{MEM+4}')
    A('s_cbranch_vccnz L_ch_g' if not NOHOP else 's_nop 0')
    A.vmq = ['g', 'g']
    A(f'ds_write_b128 v{vMw}, v[{MEM}:{MEM+3}] offset:{L_MEM}', 'mw')
    A(f'ds_write_b128 v{vMw}, v[{MEM+4}:{MEM+7}] offset:{L_MEM+1024}', 'mw')
    stamp(0)
    q7 = ldw_i('q', 0, 7, WBA) + ldw_i('q', 1, 7, WBB)
    k6 = ldw_i('k', 0, 6, QT) + ldw_i('k', 1, 6, QT + 8)
    k7 = ldw_i('k', 0, 7, WBA) + ldw_i('k', 1, 7, WBB)
    v1 = ldw_i('v', 0, 1, QT) + ldw_i('v', 1, 1, QT + 8)
    def b1():
        A.wait_ds('mw')
        A(f's_or_b64 s[{sCk}:{sCk+1}], s[{sCk}:{sCk+1}], s[{sCk+2}:{sCk+3}]')
        A(f's_or_b64 s[{sCk}:{sCk+1}], s[{sCk}:{sCk+1}], vcc')
        A('s_cbranch_scc1 L_ch_torn' if not NOHOP else 's_nop 0')
        if timing:
            A(f's_add_u32 s{sPg}, s{sPg}, s{sSpin}')
            if not LIGHT:
                A(f's_sub_u32 s{sT0}, s{sSt}, s{sLast}'); A(f's_add_u32 s{sAcc+NST-1}, s{sAcc+NST-1}, s{sT0}')
        A('s_barrier')
    def post(a, dst, scale=False):
        r = [f'v_add_f32 v{a}, v{a}, v{a+2}', f'v_add_f32 v{a+1}, v{a+1}, v{a+3}']
        if scale: r += [f'v_mul_f32 v{a}, s{sC}, v{a}', f'v_mul_f32 v{a+1}, s{sC}, v{a+1}']
        return r + [f'v_cvt_pk_bf16_f32 v{dst}, v{a}, v{a+1}']
    qp = post(AQ, AQ, True) + post(AQ + 4, AQ + 4, True)
    kp0 = post(AK, KV); kp1 = post(AK + 4, KV + 1)
    frd = [(f'ds_read_b64_tr_b16 v[{QT+4*ks+2*hi}:{QT+4*ks+2*hi+1}], v{vQr} offset:{L_K + ks*1024 + hi*512}', ('f', ks)) for ks in range(4) for hi in range(2)]
    rs = [(f'buffer_store_dwordx4 v[{KV}:{KV+3}], v{vXl}, {W}, s{sRst} offen', 'rst'),
          (f'buffer_store_dwordx4 v[{KV}:{KV+3}], v{vXl}, {W}, s{sRst} offen offset:1024', 'rst'),
          (f'buffer_store_dword v{KV}, v{vPub}, {W}, s{sPubRst} offen', 'rst')]
    pfl = [(f'buffer_load_dword v{vPf}, {W}, s{sPf} offen lds', 'pf')]
    if PFMODE == 2: pfl.append((f'buffer_load_dword v{vPf}, {W}, s{sPf2} offen lds', 'pf'))
    if NO_PF: pfl = []
    plan = [
        (('v', 0, 0, WBA), [f'v_cmp_u_f32 s[{sCk}:{sCk+1}], v{MEM+1}, v{MEM+5}']),
        (('v', 1, 0, WBB), [f'v_cmp_u_f32 s[{sCk+2}:{sCk+3}], v{MEM+2}, v{MEM+6}']),
        (('q', 0, 0), [f'v_cmp_u_f32 vcc, v{MEM+3}, v{MEM+7}']),
        (('q', 1, 0), [f's_mov_b32 m0, s{sMKX}']),
        (('q', 0, 1), [b1, memrd(6)]),
        (('q', 1, 1), [memrd(7)]),
        (('k', 0, 0), [memrd(2), dkx[0], f's_mov_b32 m0, {L_D}', f's_mov_b64 exec, s[{sPfEx}:{sPfEx+1}]'] + pfl + ['s_mov_b64 exec, -1']),
        (('k', 1, 0), [memrd(3), f'v_mov_b64 v[{KV}:{KV+1}], -1']),
        (('k', 0, 1), [memrd(4), sc[0], sc[1]]),
        (('k', 1, 1), [memrd(5), sc[2], f'v_mov_b64 v[{KV+2}:{KV+3}], -1']),
        (('q', 0, 6, QT), [q7[0], sc[3], sc[4]]),
        (('q', 1, 6, QT + 8), [q7[1], f's_add_u32 s{sPf}, s{sPf}, s{sPfInc}', f's_add_u32 s{sPf2}, s{sPf2}, s{sPfInc}']),
        (('q', 0, 2), [q7[2], f's_mov_b32 m0, s{sMKX}']),
        (('q', 1, 2), [q7[3], sc[5]]),
        (('q', 0, 3), [k6[0], sc[6], sc[7]]),
        (('q', 1, 3), [k6[1], sc[8]]),
        (('q', 0, 4), [k6[2], sc[9], sc[10]]),
        (('q', 1, 4), [k6[3], sc[11], rs[0]]),
        (('q', 0, 7, WBA), [sc[12], sc[13], rs[1]]),
        (('q', 1, 7, WBB), [k7[0], sc[14], sc[15]]),
        (('q', 0, 5), [k7[1], rs[2]]),
        (('q', 1, 5), [k7[2], lambda: stamp(1)]),
        (('k', 0, 6, QT), [k7[3], 's_nop 1']),
        (('k', 1, 6, QT + 8), [v1[0], qp[0]]),
        (('k', 0, 2), [v1[1], qp[1]]),
        (('k', 0, 3), [v1[2], lambda: A.wait_ds(('w', WBB)), qp[2]]),
        (('k', 0, 7, WBA), [v1[3], qp[3]]),
        (('k', 1, 7, WBB), [kxrd2(1, 0), qp[4]]),
        (('k', 0, 4), [kxrd2(1, 1), qp[5]]),
        (('k', 0, 5), [kxrd2(1, 2), qp[6]]),
        (('k', 1, 2), [kxrd2(1, 3), qp[7]]),
        (('k', 1, 3), [qp[8]]),
        (('k', 1, 4), [lambda: A.wait_ds(('w', QT + 8)), qp[9]]),
        (('k', 1, 5), [(f'ds_write2_b32 v{vQw}, v{AQ}, v{AQ+4} offset0:1 offset1:129', 'qw'), lambda: stamp(2), kp0[0]]),
        (('v', 0, 1, QT), ['s_nop 1', kp0[1]]),
        (('v', 1, 1, QT + 8), ['s_nop 1', kp0[2]] + kp1 + [(f'ds_write2_b32 v{vQw}, v{KV}, v{KV+1} offset0:0 offset1:128', 'kw')]),
        (('v', 0, 2), []),
        (('v', 1, 2), []),
        (('v', 0, 3), []),
        (('v', 1, 3), [lambda: A.wait_ds('kw'), 's_barrier', lambda: stamp(3)] + frd[0:2]),
        (('v', 0, 4), frd[2:4]),
        (('v', 1, 4), frd[4:6]),
        (('v', 0, 5), frd[6:8]),
        (('v', 1, 5), [dkx[1], dkx[2]]),
        (('v', 0, 6), [lambda: A.wait_vm('g'), f's_mov_b32 m0, s{sMVX}']),
        (('v', 1, 6), [(f'ds_read_b128 v[{MEM+12}:{MEM+15}], v{vMw} offset:{L_VX}', 'vx')]),
        (('v', 0, 7), [(f'ds_read_b128 v[{MEM+16}:{MEM+19}], v{vMw} offset:{L_VX + 1024}', 'vx')]),
        (('v', 1, 7), [lambda: A.wait_ds(('f', 3)), lambda: stamp(4)]),
    ]
    for mm, fl in plan:
        if mm: sm(*mm)
        EL(fl)
    X = AQ; TT = vT[3]; MX = vT[2]
    ET = MEM
    VXR = MEM + 12; ONES = MEM + 20
    PX = AK + 4
    def smm(d, a, ks):
        c = '0' if ks == 0 else f'v[{d}:{d+3}]'
        A(f'v_mfma_f32_16x16x32_bf16 v[{d}:{d+3}], v[{a}:{a+3}], v[{QT+4*ks}:{QT+4*ks+3}], {c}')
    vp = post(AV, KV + 2) + post(AV + 4, KV + 3)
    o0 = ldw_i('o', 0, 0, KXB) + ldw_i('o', 1, 0, KXB + 8)
    o1 = ldw_i('o', 0, 1, WBA) + ldw_i('o', 1, 1, WBB)
    ex = lambda i, src: f'v_exp_f32 v{ET+i}, v{src}'
    def kmstore(): E((f'buffer_store_dwordx4 v[{KV}:{KV+3}], v{vXl}, {W}, s{sKM} offen {kv_flags} {KMF}', 'km'))
    smm(X, KXB, 0); A(f'v_mov_b64 v[{ONES}:{ONES+1}], s[{sOnes}:{sOnes+1}]'); A(f'v_mov_b64 v[{ONES+2}:{ONES+3}], s[{sOnes}:{sOnes+1}]')
    smm(X, KXB + 4, 1); A('s_nop 2')
    smm(X, KXB + 8, 2); EL(vp[0:2])
    smm(X, KXB + 12, 3); A.wait_ds('vx'); EL(vp[2:4])
    smm(X + 4, WBA, 0); E(o0[0]); EL(vp[4:6])
    smm(X + 4, WBA + 4, 1); E(o0[1]); E(dvx[0]); E(dvx[1])
    smm(X + 4, WBA + 8, 2); E(o0[2]); E(ex(0, X))
    smm(X + 4, WBA + 12, 3); E(o0[3]); E(ex(1, X + 1))
    smm(AK, QT, 0); E(o1[0]); E(ex(2, X + 2))
    smm(AK, QT + 4, 1); E(o1[1]); E(ex(3, X + 3))
    smm(AK, QT + 8, 2); E(o1[2]); E(ex(4, X + 4))
    smm(AK, QT + 12, 3); E(o1[3]); E(ex(5, X + 5))
    stamp(5)
    EL([ex(6, X + 6), ex(7, X + 7)])
    for n in range(4): A(f'v_cvt_pk_bf16_f32 v{PX+n}, v{ET+2*n}, v{ET+2*n+1}')
    LL = MEM + 24; O0 = QT; O1 = QT + 4
    def pv(mid=None):
        A(f'v_mfma_f32_16x16x32_bf16 v[{LL}:{LL+3}], v[{ONES}:{ONES+3}], v[{PX}:{PX+3}], 0')
        if mid: EL(mid[0])
        A(f'v_mfma_f32_16x16x32_bf16 v[{O0}:{O0+3}], v[{VXR}:{VXR+3}], v[{PX}:{PX+3}], 0')
        if mid: EL(mid[1])
        A(f'v_mfma_f32_16x16x32_bf16 v[{O1}:{O1+3}], v[{VXR+4}:{VXR+7}], v[{PX}:{PX+3}], 0')
        if mid: EL(mid[2])
        A(f'v_mfma_f32_16x16x16_bf16 v[{LL}:{LL+3}], v[{ONES}:{ONES+1}], v[{PM}:{PM+1}], v[{LL}:{LL+3}]')
        if mid: EL(mid[3])
        A(f'v_mfma_f32_16x16x16_bf16 v[{O0}:{O0+3}], v[{KV+2}:{KV+3}], v[{PM}:{PM+1}], v[{O0}:{O0+3}]')
        if mid: EL(mid[4])
        A(f'v_mfma_f32_16x16x16_bf16 v[{O1}:{O1+3}], v[{KV+2}:{KV+3}], v[{PM+2}:{PM+3}], v[{O1}:{O1+3}]')
        if mid: EL(mid[5])
    EL([ex(8, AK)])
    pv([[ex(9, AK + 1)],
        [f'v_cvt_pk_bf16_f32 v{PM}, v{ET+8}, v{ET+9}', f'v_cvt_pk_bf16_f32 v{PM+3}, v{ET+8}, v{ET+9}'],
        [f'v_max3_f32 v{MX}, |v{X}|, |v{X+1}|, |v{X+2}|', f'v_max3_f32 v{TT}, |v{X+3}|, |v{X+4}|, |v{X+5}|'],
        [f'v_max3_f32 v{MX}, v{MX}, |v{X+6}|, |v{X+7}|', f'v_max3_f32 v{TT}, v{TT}, |v{AK}|, |v{AK+1}|'],
        [f'v_max_f32 v{MX}, v{MX}, v{TT}', f'v_cmp_lt_f32 vcc, s{sThr}, v{MX}'],
        [f's_cmp_eq_u32 s{sStep}, {nsteps-1}', 's_cbranch_scc1 L_ch_last',
         f's_and_b64 vcc, vcc, s[{sVal}:{sVal+1}]', 's_cbranch_scc1 L_ch_slow' if not NOHOP else 's_nop 0']])
    A.label('L_ch_pvdone')
    A(f'v_rcp_f32 v{TT}, v{LL}')
    E(dvx[2])
    for i in range(0, 8, 2): A(f'v_pk_mul_f32 v[{O0+i}:{O0+i+1}], v[{O0+i}:{O0+i+1}], v[{TT-1}:{TT}] op_sel:[0,1] op_sel_hi:[1,1]')
    for i in range(4): A(f'v_cvt_pk_bf16_f32 v{O0+i}, v{O0+2*i}, v{O0+2*i+1}')
    A(f'ds_write_b128 v{vOw}, v[{O0}:{O0+3}]', 'ow')
    stamp(6)
    A.wait_vm('dkx0')
    kmstore()
    pre_zero(MEM, MEM + 12)
    A.wait_ds('ow')
    A('s_barrier')
    OA = AQ
    A(f'ds_read_b128 v[{OA}:{OA+3}], v{vOr}', ('oa', 0))
    A(f'ds_read_b128 v[{OA+4}:{OA+7}], v{vOr} offset:1024', ('oa', 1))
    pre_zero(MEM + 12, MEM + 32)
    zl = [f'v_cndmask_b32 v{KV+k}, 0, v{vSel}, s[{sMask[k]}:{sMask[k]+1}]' for k in range(4)] + ['s_nop 0']
    A.wait_ds(('oa', 1))
    stamp(7)
    obuf = {(0, 0): KXB, (1, 0): KXB + 8, (0, 1): WBA, (1, 1): WBB}
    def so(tile, t):
        d = MEM + 4 * tile
        A(f'v_smfmac_f32_16x16x64_bf16 v[{d}:{d+3}], v[{OA+4*t}:{OA+4*t+3}], {wop("o", tile, t, obuf.get((tile, t)))}, v{vIdx}')
    PK = AK
    SEL = KV; RD = AV; RL = MEM + 8
    op = lambda t: post(MEM + 4 * t, PK + t)
    def pst(p): return (f'buffer_store_dwordx2 v[{PK+2*p}:{PK+2*p+1}], v{vPst}, {W}, s{sPartSt0 if p < 2 else sPartSt1} offen offset:{(p%2)*2048}', 'ps')
    P = [op(t) for t in range(8)]
    oplan = [
        ((0, 0), [f's_add_u32 s{sKM}, s{sKM}, {KMINC}', zl[0]]), ((0, 1), ['s_nop 1', zl[1]]), ((1, 0), ['s_nop 1', zl[2]]), ((1, 1), ['s_nop 0', zl[3]]),
        ((2, 0), [zl[4], P[0][0]]), ((2, 1), [f's_add_u32 s{sStep}, s{sStep}, 1', P[0][1], P[0][2]]), ((3, 0), [P[1][0]]), ((3, 1), [P[1][1], P[1][2]]),
        ((4, 0), [pst(0), P[2][0]]), ((4, 1), [P[2][1], P[2][2]]), ((5, 0), [P[3][0]]), ((5, 1), [P[3][1], P[3][2]]),
        ((6, 0), [pst(1), P[4][0]]), ((6, 1), [P[4][1], P[4][2]]), ((7, 0), [P[5][0]]), ((7, 1), [P[5][1], P[5][2], pst(2)]),
    ]
    for mm, fl in oplan:
        so(*mm); EL(fl)
    for t in (6, 7):
        d = MEM + 4 * t
        A(f'v_pk_add_f32 v[{d}:{d+1}], v[{d}:{d+1}], v[{d+2}:{d+3}]')
        A(f'v_cvt_pk_bf16_f32 v{PK+t}, v{d}, v{d+1}')
    E(pst(3))
    stamp(8)
    if DIAG:
        for n, cnt in enumerate((8, 7, 4, 3, 2, 1, 0)):
            A(f's_waitcnt vmcnt({cnt})'); stamp(2 + n, True)
    def rload():
        A(f'buffer_load_dwordx4 v[{RL}:{RL+3}], v{vRed}, {W}, s{sRed} offen sc1', 'r')
        A(f'buffer_load_dwordx4 v[{RL+4}:{RL+7}], v{vRed}, {W}, s{sRed} offen offset:1024 sc1', 'r')
    pw = ldw_i('v', 0, 0, WBA) + ldw_i('v', 1, 0, WBB) + ldw_i('q', 0, 6, QT) + ldw_i('q', 1, 6, QT + 8) + [kxrd2(0, ks) for ks in range(4)]
    zz = [f'v_mov_b64 v[{r}:{r+1}], 0' for r in list(range(AQ, AK + 8, 2)) + [AV + 4, AV + 6]] + [f'v_xor_b32 v{vT[a-1]}, {a << 11}, v{vMw}' for a in (1, 2, 3)]
    chores = [zz, pw[0:4], pw[4:8], pw[8:12]]
    A(f's_mov_b32 s{sSpin}, 0')
    for wv in range(4):
        EL(chores[wv])
        for _ in range(RED_DELAY): A('s_nop 3')
        A(f's_cmp_lg_u32 s{sWave}, {wv}')
        A(f's_cbranch_scc1 L_ch_st{wv}')
        rload()
        A.label(f'L_ch_st{wv}')
    A.label('L_ch_r1')
    A('s_waitcnt vmcnt(0)')
    A(f'v_mfma_f32_16x16x32_bf16 v[{RD}:{RD+3}], v[{SEL}:{SEL+3}], v[{RL}:{RL+3}], 0')
    A(f'v_cmp_u_f32 vcc, v{RL}, v{RL+4}')
    A(f'v_mfma_f32_16x16x32_bf16 v[{RD}:{RD+3}], v[{SEL}:{SEL+3}], v[{RL+4}:{RL+7}], v[{RD}:{RD+3}]')
    A('s_cbranch_vccnz L_ch_r' if not NOHOP else 's_nop 0')
    for rot in (4, 8):
        for r in (RD, RD + 1):
            A(f'v_add_f32_dpp v{r}, v{r}, v{r} row_ror:{rot} row_mask:0xf bank_mask:0xf')
    A(f'v_cvt_pk_bf16_f32 v{PM}, v{RD}, v{RD+1}')
    A(f'v_cmpx_o_f32 vcc, v{RD}, v{RD+1}')
    A(f'buffer_store_dword v{PM}, v{vPub}, {W}, s{sPub} offen', 'pub')
    A('s_mov_b64 exec, -1')
    A('s_cmp_eq_u64 vcc, -1')
    A('s_cbranch_scc0 L_ch_r' if not NOHOP else 's_nop 0')
    stamp(9)
    if timing: A(f's_add_u32 s{sPr}, s{sPr}, s{sSpin}')
    if mega:
        A(f's_cmp_lg_u32 s{sStep}, 54')
        A('s_cbranch_scc1 L_ch_step')
        wait_kv('L_ch_wk7', 7, 1, MEM + 8, MEM + 9)
    A('s_branch L_ch_step')
    A.label('L_ch_r')
    rload()
    A(f's_add_u32 s{sSpin}, s{sSpin}, 1')
    A(f's_cmp_gt_u32 s{sSpin}, {SPIN_MAX}')
    A('s_cbranch_scc1 L_ch_fail')
    A('s_branch L_ch_r1')
    A.label('L_ch_torn')
    A('s_nop 7')
    pre_zero(AQ, AV + 8)
    A('s_waitcnt vmcnt(0)')
    gload()
    A('s_branch L_ch_g')
    A.label('L_ch_slow')
    A('s_nop 7')
    A(f'v_max3_f32 v{MX}, v{X}, v{X+1}, v{X+2}')
    A(f'v_max3_f32 v{MX}, v{MX}, v{X+3}, v{X+4}')
    A(f'v_max3_f32 v{MX}, v{MX}, v{X+5}, v{X+6}')
    A(f'v_max3_f32 v{MX}, v{MX}, v{X+7}, v{AK}')
    A(f'v_max_f32 v{MX}, v{MX}, v{AK+1}')
    A(f'v_mov_b32 v{TT}, v{MX}')
    A(f'v_permlane32_swap_b32 v{MX}, v{TT}')
    A(f'v_max_f32 v{MX}, v{MX}, v{TT}')
    A(f'v_mov_b32 v{TT}, v{MX}')
    A(f'v_permlane16_swap_b32 v{MX}, v{TT}')
    A(f'v_max_f32 v{MX}, v{MX}, v{TT}')
    vs = [X + i for i in range(8)] + [AK, AK + 1]
    for n, r in enumerate(vs): A(f'v_sub_f32 v{ET+n}, v{r}, v{MX}')
    for n, r in enumerate(vs): A(f'v_exp_f32 v{ET+n}, v{ET+n}')
    for n in range(4): A(f'v_cvt_pk_bf16_f32 v{PX+n}, v{ET+2*n}, v{ET+2*n+1}')
    A(f'v_cvt_pk_bf16_f32 v{PM}, v{ET+8}, v{ET+9}'); A(f'v_cvt_pk_bf16_f32 v{PM+3}, v{ET+8}, v{ET+9}')
    pv()
    A('s_nop 7')
    A('s_branch L_ch_pvdone')
    A.label('L_ch_last')
    kmstore()
    A('s_branch L_ch_done')
    A.label('L_ch_fail')
    A(f's_mov_b32 s{sFail}, 1')
    A.label('L_ch_done')
    if timing:
        A('s_waitcnt vmcnt(0) lgkmcnt(0)')
        if LIGHT:
            A(f's_memtime s[{sSt+2}:{sSt+3}]'); A('s_waitcnt lgkmcnt(0)'); A(f's_sub_u32 s{sAcc}, s{sSt+2}, s{sSt}')
        A(f's_memrealtime s[{sSt}:{sSt+1}]'); A('s_waitcnt lgkmcnt(0)')
        A(f's_sub_u32 s{sT0}, s{sSt}, s{sRt}')
        A(f's_sub_u32 s{sT1}, s{sRt}, s{sRt0}')
        srcs = [sAcc + i for i in range(NST)] + [sPg, sPr, sFail, sT0, sT1, sLast]
        for i, sr in enumerate(srcs): A(f'v_mov_b32 v{16+i}, s{sr}')
        A(f"""
s_lshl_b32 s{sT0}, s{sH}, 8
s_lshl_b32 s{sT1}, s{sWave}, 6
s_add_u32 s{sT0}, s{sT0}, s{sT1}
s_add_u32 s{sT0}, s{sT0}, {OFF_TIM}
v_mov_b32 v12, 0
s_mov_b64 exec, 1
""")
        for i in range(4):
            A(f'buffer_store_dwordx4 v[{16+4*i}:{19+4*i}], v12, {W}, s{sT0} offen offset:{16*i}')
    A('s_waitcnt vmcnt(0) lgkmcnt(0)')

def gen_standalone(timing=False, nsteps=64):
    A = Asm()
    A.raw('; @launch grid=(256,1,1) block=(256,1,1) lds=163840')
    A.raw('.amdgcn_target "amdgcn-amd-amdhsa--gfx950"\n.text\n.globl chain_kernel\n.p2align 8\n.type chain_kernel,@function\nchain_kernel:')
    A(f'''
s_cmp_ge_u32 s2, 256
s_cbranch_scc1 L_end
s_load_dwordx2 s[{sWS}:{sWS+1}], s[0:1], 120
s_load_dwordx2 s[{sDBG}:{sDBG+1}], s[0:1], 112
s_load_dwordx2 s[{sWQ}:{sWQ+1}], s[0:1], 16
s_load_dwordx2 s[{sWK}:{sWK+1}], s[0:1], 24
s_load_dwordx2 s[{sWV}:{sWV+1}], s[0:1], 32
s_load_dwordx2 s[{sWO}:{sWO+1}], s[0:1], 40
s_load_dwordx2 s[{sM0}:{sM0+1}], s[0:1], 8
s_memrealtime s[{sRt0}:{sRt0+1}]
s_getreg_b32 s3, hwreg(HW_REG_XCC_ID)
s_and_b32 s3, s3, 15
s_cmp_lg_u32 s3, 0
s_cbranch_scc1 L_end
v_lshrrev_b32 v1, 6, v0
s_mov_b32 s{sWS+2}, {WS_BYTES}
s_mov_b32 s{sWS+3}, 0x20000
s_mov_b32 s{sDBG+2}, 256
s_mov_b32 s{sDBG+3}, 0x20000
v_readfirstlane_b32 s{sWave}, v1
''')
    for s in (sWQ, sWK, sWV, sWO):
        A(f's_mov_b32 s{s+2}, 0x400000'); A(f's_mov_b32 s{s+3}, 0x20000')
    A(f's_mov_b32 s{sM0+2}, 8192'); A(f's_mov_b32 s{sM0+3}, 0x20000')
    A(f'''
s_waitcnt lgkmcnt(0)
s_cmp_lg_u32 s{sWave}, 0
s_cbranch_scc1 L_norank
v_mov_b32 v2, {DBG_RANK0*4}
v_mov_b32 v3, 1
s_mov_b64 exec, 1
buffer_atomic_add v3, v2, s[{sDBG}:{sDBG+3}], 0 offen sc0
s_waitcnt vmcnt(0)
s_mov_b64 exec, -1
v_readfirstlane_b32 s{sH}, v3
v_lshlrev_b32 v2, 13, v0
v_mov_b32 v3, s{sH}
s_mov_b64 exec, 15
ds_write_b32 v2, v3
s_mov_b64 exec, -1
s_waitcnt lgkmcnt(0)
L_norank:
s_barrier
v_lshlrev_b32 v2, 13, v1
ds_read_b32 v3, v2
s_waitcnt lgkmcnt(0)
v_readfirstlane_b32 s{sH}, v3
s_nop 3
s_cmp_ge_u32 s{sH}, {NCU}
s_cbranch_scc1 L_end
''')
    A.dsq = []; A.vmq = []
    gen_chain(A, timing=timing, nsteps=nsteps)
    A.label('L_end')
    A('s_endpgm')
    A.raw('''.section .rodata,"a"
.p2align 6
.amdhsa_kernel chain_kernel
  .amdhsa_next_free_vgpr 512
  .amdhsa_next_free_sgpr 102
  .amdhsa_accum_offset 256
  .amdhsa_group_segment_fixed_size 0
  .amdhsa_kernarg_size 128
  .amdhsa_user_sgpr_count 2
  .amdhsa_user_sgpr_kernarg_segment_ptr 1
  .amdhsa_system_sgpr_workgroup_id_x 1
  .amdhsa_float_denorm_mode_32 3
.end_amdhsa_kernel''')
    return A.text()
```

```python
import sys
from asmlib import Asm
import chain as C, stagea as S, tail as T
NAME = 'gated_mix__memory_aug_recurrent_mem_tr__dense_activation_squared_relu__prompt'
HDR = open(f'cdna_kernels/{NAME}.s.ref').read().split('; Override launch')[0]
sWS, sDBG, sWave = C.sWS, C.sDBG, C.sWave
sRank = 18
sW0 = 90
OFF_WT = C.OFF_TIM + 0x10000

def gen(timing=False, **opts):
    C.NO_PF = 1; C.G_DELAY = 8; C.RED_DELAY = 2; C.LIGHT = 1
    for k, v in opts.items(): setattr(C, k, v)
    name = NAME + '_kernel'
    A = Asm()
    A.raw(HDR.rstrip())
    A.raw('; @launch grid=(256,1,1) block=(256,1,1) lds=163840')
    A.raw(f'.amdgcn_target "amdgcn-amd-amdhsa--gfx950"\n.text\n.globl {name}\n.p2align 8\n.type {name},@function\n{name}:')
    W = f's[{sWS}:{sWS+3}]'
    A(f'''
s_cmp_ge_u32 s2, 256
s_cbranch_scc1 L_end
s_load_dwordx2 s[{sWS}:{sWS+1}], s[0:1], 120
s_load_dwordx2 s[{sDBG}:{sDBG+1}], s[0:1], 112
s_getreg_b32 s3, hwreg(HW_REG_XCC_ID)
s_and_b32 s3, s3, 7
v_lshrrev_b32 v1, 6, v0
s_mov_b32 s{sWS+2}, {C.WS_BYTES}
s_mov_b32 s{sWS+3}, 0x20000
s_mov_b32 s{sDBG+2}, 256
s_mov_b32 s{sDBG+3}, 0x20000
v_readfirstlane_b32 s{sWave}, v1
''')
    if timing: A(f's_memrealtime s[{sW0}:{sW0+1}]')
    A('s_waitcnt lgkmcnt(0)')
    T.rank_election(A, 'mg', sRank)
    A(f'''
s_cmp_ge_u32 s{sRank}, 32
s_cbranch_scc1 L_end
s_cmp_lg_u32 s3, 0
s_cbranch_scc1 L_worker
''')
    A(f'''
s_mov_b32 s{C.sH}, s{sRank}
s_load_dwordx2 s[{C.sWQ}:{C.sWQ+1}], s[0:1], 16
s_load_dwordx2 s[{C.sWK}:{C.sWK+1}], s[0:1], 24
s_load_dwordx2 s[{C.sWV}:{C.sWV+1}], s[0:1], 32
s_load_dwordx2 s[{C.sWO}:{C.sWO+1}], s[0:1], 40
s_load_dwordx2 s[{C.sM0}:{C.sM0+1}], s[0:1], 8
''')
    if timing: A(f's_mov_b32 s{C.sRt0}, s{sW0}')
    for s in (C.sWQ, C.sWK, C.sWV, C.sWO):
        A(f's_mov_b32 s{s+2}, 0x400000'); A(f's_mov_b32 s{s+3}, 0x20000')
    A(f's_mov_b32 s{C.sM0+2}, 8192'); A(f's_mov_b32 s{C.sM0+3}, 0x20000')
    A('s_waitcnt lgkmcnt(0)')
    C.gen_chain(A, timing=timing, kv_flags='sc1', mega=True)
    A('s_endpgm')
    A.label('L_worker')
    A.dsq = []; A.vmq = []
    S.load_args(A); T.load_args(A)
    def wstamp(i):
        if timing:
            A(f's_memrealtime s[{sW0+8}:{sW0+9}]'); A('s_waitcnt lgkmcnt(0)'); A(f's_sub_u32 s{sW0+2+i}, s{sW0+8}, s{sW0}')
    A(f'''
s_sub_u32 s{S.sT0}, s3, 1
s_lshl_b32 s{S.sTile}, s{S.sT0}, 5
s_add_u32 s{S.sTile}, s{S.sTile}, s{sRank}
s_mov_b32 s{S.sNW}, 224
s_and_b32 s{T.sCb}, s{sRank}, 15
s_lshr_b32 s{T.sGrp}, s{sRank}, 4
s_lshl_b32 s{S.sT0}, s{S.sT0}, 1
s_add_u32 s{T.sGrp}, s{T.sGrp}, s{S.sT0}
s_mov_b32 s{T.sNG}, 14
s_mov_b32 s{S.sFlag}, s{S.sTile}
v_and_b32 v2, 63, v0
v_lshlrev_b32 v2, 4, v2
v_mov_b32 v4, -1
v_mov_b32 v5, -1
v_mov_b32 v6, -1
v_mov_b32 v7, -1
s_lshl_b32 s{S.sT0}, s{T.sGrp}, 17
s_lshl_b32 s{S.sT1}, s{T.sCb}, 13
s_add_u32 s{S.sT0}, s{S.sT0}, s{S.sT1}
s_lshl_b32 s{S.sT1}, s{sWave}, 11
s_add_u32 s{S.sT0}, s{S.sT0}, s{S.sT1}
s_add_u32 s{S.sT0}, s{S.sT0}, {C.OFF_KMVM}
s_mov_b32 s{S.sT1}, s{T.sGrp}
L_w_rst:
buffer_store_dwordx4 v[4:7], v2, {W}, s{S.sT0} offen sc1
buffer_store_dwordx4 v[4:7], v2, {W}, s{S.sT0} offen offset:1024 sc1
s_add_u32 s{S.sT0}, s{S.sT0}, {14 << 17}
s_add_u32 s{S.sT1}, s{S.sT1}, 14
s_cmp_lt_u32 s{S.sT1}, 64
s_cbranch_scc1 L_w_rst
s_waitcnt lgkmcnt(0)
s_barrier
''')
    wstamp(0)
    S.gen_setup(A)
    def signal(A):
        A(f'''
s_add_u32 s{S.sT0}, s{S.sTb}, {C.DBG_KV}
s_add_u32 s{S.sT1}, s{S.sTb}, {C.DBG_QH}
s_cmp_lt_u32 s{S.sTile}, 256
s_cselect_b32 s{S.sT0}, s{S.sT0}, s{S.sT1}
s_lshl_b32 s{S.sT0}, s{S.sT0}, 2
v_mov_b32 v{S.vT0}, s{S.sT0}
v_mov_b32 v{S.vT1}, 1
s_waitcnt vmcnt(0)
s_barrier
s_cmp_lg_u32 s{sWave}, 0
s_cbranch_scc1 L_w_nosig
s_mov_b64 exec, 1
buffer_atomic_add v{S.vT1}, v{S.vT0}, s[{sDBG}:{sDBG+3}], 0 offen
s_mov_b64 exec, -1
L_w_nosig:
''')
        if timing:
            A(f's_cmp_lt_u32 s{S.sTile}, 224'); A('s_cbranch_scc0 L_w_ns1'); wstamp(1); A.label('L_w_ns1')
    S.gen_tiles(A, st_flags='sc1', signal=signal)
    wstamp(2)
    def wait_inputs(A):
        A(f'''
s_lshr_b32 s{T.sT0}, s{T.sSeg}, 3
s_lshl_b32 s{T.sT0}, s{T.sT0}, 2
v_lshlrev_b32 v{T.vT0}, 5, v{T.vLane}
v_mul_u32_u24 v{T.vT2}, 9, v{T.vLane}
v_sub_u32 v{T.vT2}, 32, v{T.vT2}
s_mov_b32 s{T.sSpin}, 0
s_mov_b64 exec, 3
L_w_wi:
buffer_load_dword v{T.vT1}, v{T.vT0}, s[{sDBG}:{sDBG+3}], s{T.sT0} offen offset:{C.DBG_KV*4} sc1
s_add_u32 s{T.sSpin}, s{T.sSpin}, 1
s_cmp_gt_u32 s{T.sSpin}, {T.SPIN_MAX}
s_cbranch_scc1 L_w_wix
s_waitcnt vmcnt(0)
v_cmp_gt_u32 vcc, v{T.vT2}, v{T.vT1}
s_cbranch_vccz L_w_wix
s_sleep 16
s_branch L_w_wi
L_w_wix:
s_waitcnt vmcnt(0)
s_mov_b64 exec, -1
''')
        A.vmq = []
    T.gen_tail(A, wait_inputs=wait_inputs)
    A('s_waitcnt vmcnt(0)')
    if timing:
        wstamp(3)
        for i in range(4): A(f'v_mov_b32 v{20+i}, s{sW0+2+i}')
        A(f's_lshl_b32 s{T.sT0}, s{S.sFlag}, 4'); A(f's_add_u32 s{T.sT0}, s{T.sT0}, {OFF_WT}')
        A('v_mov_b32 v2, 0'); A('s_mov_b64 exec, 1')
        A(f'buffer_store_dwordx4 v[20:23], v2, {W}, s{T.sT0} offen'); A('s_waitcnt vmcnt(0)')
    A.label('L_end')
    A('s_endpgm')
    A.raw('.section .rodata,"a"\n.p2align 6\n' + S.KD.format(name=name))
    return A.text()
if __name__ == '__main__':
    open(sys.argv[1], 'w').write(gen(timing=len(sys.argv) > 2))
```

```python
import re

REG_RE = re.compile(r'^(-?\|?)([vas])(\d+)\|?$')
RNG_RE = re.compile(r'^(-?\|?)([vas])\[(\d+):(\d+)\]\|?$')

def regs_of(tok):
    tok = tok.strip()
    tok = re.sub(r'^(neg|abs)\((.*)\)$', r'\2', tok)
    m = REG_RE.match(tok)
    if m: return [(m.group(2), int(m.group(3)))]
    m = RNG_RE.match(tok)
    if m: return [(m.group(2), i) for i in range(int(m.group(3)), int(m.group(4)) + 1)]
    if tok == 'vcc': return [('s', 106), ('s', 107)]
    if tok == 'exec': return [('s', 126), ('s', 127)]
    if tok == 'm0': return [('s', 124)]
    return []

TRANS = ('v_exp_f32', 'v_log_f32', 'v_rcp_f32', 'v_rsq_f32', 'v_sqrt_f32', 'v_sin_f32', 'v_cos_f32')

def mfma_passes(op):
    if '32x32x1_2b' in op: return 16
    if '32x32x16' in op or '32x32x8' in op or '32x32x32' in op: return 8
    if '16x16x32' in op or '16x16x16' in op or '16x16x64' in op: return 4
    raise ValueError(op)

class Ins:
    __slots__ = ('text', 'op', 'cls', 'defs', 'uses', 'srcc', 'ab', 'passes', 'dpp', 'wide_store', 'states')

def parse(text):
    t = text.split(';')[0].strip()
    I = Ins(); I.text = text; I.defs = []; I.uses = []; I.srcc = []; I.ab = []; I.passes = 0; I.dpp = False
    I.wide_store = []; I.states = 1
    if not t or t.endswith(':') or t.startswith('.'):
        I.op = ''; I.cls = 'label' if t.endswith(':') else 'none'; I.states = 0
        return I
    parts = t.split(None, 1)
    op = parts[0]; I.op = op
    rest = parts[1] if len(parts) > 1 else ''
    ops = [x.strip() for x in rest.split(',')]
    toks = []
    for o in ops:
        toks.append(o.split()[0] if o.split() else '')
    mods = rest
    if op == 's_nop':
        I.cls = 'salu'; I.states = int(toks[0], 0) + 1; return I
    if op.startswith('v_mfma') or op.startswith('v_smfmac'):
        I.cls = 'mfma'; I.passes = mfma_passes(op)
        I.defs = regs_of(toks[0]); I.ab = regs_of(toks[1]) + regs_of(toks[2])
        if op.startswith('v_smfmac'):
            I.srcc = regs_of(toks[0]); I.ab += regs_of(toks[3])
        else:
            I.srcc = regs_of(toks[3])
        I.uses = I.ab + I.srcc
        return I
    if op.startswith('v_'):
        I.cls = 'trans' if op.replace('_e32', '').replace('_e64', '') in TRANS else 'valu'
        I.dpp = ('_dpp' in op) or ('row_' in mods) or ('quad_perm' in mods)
        if op.startswith('v_cmpx'):
            I.defs = regs_of(toks[0]) + regs_of('exec'); I.uses = sum((regs_of(x) for x in toks[1:]), [])
        elif op.startswith('v_cmp'):
            I.defs = regs_of(toks[0]); I.uses = sum((regs_of(x) for x in toks[1:]), [])
        elif op.startswith('v_permlane') and 'swap' in op:
            I.defs = regs_of(toks[0]) + regs_of(toks[1]); I.uses = list(I.defs)
        elif op.startswith('v_add_co') or op.startswith('v_sub_co') or op.startswith('v_addc_co'):
            I.defs = regs_of(toks[0]) + regs_of(toks[1]); I.uses = sum((regs_of(x) for x in toks[2:]), [])
        else:
            I.defs = regs_of(toks[0]); I.uses = sum((regs_of(x) for x in toks[1:]), [])
            if op.startswith('v_fmac') or op.startswith('v_dot2c') or I.dpp or op.startswith('v_writelane'):
                I.uses += regs_of(toks[0])
        return I
    if op.startswith('ds_'):
        I.cls = 'ds'
        if op.startswith('ds_read') or op.startswith('ds_bpermute') or op.startswith('ds_swizzle') or op.startswith('ds_permute'):
            I.defs = regs_of(toks[0]); I.uses = sum((regs_of(x) for x in toks[1:]), [])
        else:
            I.uses = sum((regs_of(x) for x in toks), [])
        return I
    if op.startswith('buffer_') or op.startswith('global_'):
        I.cls = 'vmem'
        lds = bool(re.search(r'\blds\b', mods)) or '_lds_' in op
        if 'load' in op and not lds:
            I.defs = regs_of(toks[0]); I.uses = sum((regs_of(x) for x in toks[1:]), [])
        elif lds:
            I.uses = sum((regs_of(x) for x in toks), []) + [('s', 124)]
            I.cls = 'vmem_lds'
        else:
            I.uses = sum((regs_of(x) for x in toks), [])
            if 'atomic' in op and 'sc0' in mods:
                I.defs = regs_of(toks[0])
            if op.endswith('x4') or op.endswith('x3'):
                data = toks[0] if op.startswith('buffer_') else toks[1]
                I.wide_store = regs_of(data)
        return I
    if op.startswith('s_'):
        I.cls = 'salu'
        if op.startswith('s_cmp') or op.startswith('s_cbranch') or op.startswith('s_branch') or op in ('s_waitcnt', 's_barrier', 's_endpgm', 's_setprio', 's_sleep'):
            I.uses = sum((regs_of(x) for x in toks), [])
        else:
            I.defs = regs_of(toks[0]); I.uses = sum((regs_of(x) for x in toks[1:]), [])
            if 'saveexec' in op: I.defs += regs_of('exec')
        return I
    raise ValueError('cannot parse: ' + text)

XDL_D_USE = {4: 8, 8: 12, 16: 20}
XDL_C_OVL = {4: 6, 8: 10, 16: 18}
XDL_C_WAR = {4: 3, 8: 7, 16: 15}

def need_states(p, c):
    n = 0
    pd = set(p.defs); cu = set(c.uses); cd = set(c.defs)
    pvalu = p.cls in ('valu', 'trans')
    cvalu = c.cls in ('valu', 'trans')
    vd = {r for r in pd if r[0] in 'va'}
    sd = {r for r in pd if r[0] == 's'}
    if pvalu:
        if c.cls == 'mfma' and vd & cu: n = max(n, 2)
        if cvalu and c.op.startswith('v_permlane') and vd & cu: n = max(n, 2)
        if cvalu and c.dpp and vd & cu: n = max(n, 2)
        if c.op.startswith('v_readlane') or c.op.startswith('v_readfirstlane'):
            if vd & cu: n = max(n, 1)
        if p.cls == 'trans' and c.cls == 'valu' and vd & cu: n = max(n, 1)
        if sd:
            if cvalu and sd & cu: n = max(n, 4 if (c.op.startswith('v_readlane') or c.op.startswith('v_writelane')) else 2)
            if c.cls in ('vmem', 'vmem_lds') and sd & cu: n = max(n, 5)
            if ('s', 126) in sd:
                if c.cls == 'mfma': n = max(n, 4)
                if cvalu and c.dpp: n = max(n, 5)
                if c.op.startswith('v_readlane') or c.op.startswith('v_readfirstlane') or c.op.startswith('v_permlane') or c.op.startswith('v_writelane'): n = max(n, 4)
            if c.op in ('s_cbranch_vccz', 's_cbranch_vccnz') and ('s', 106) in sd: n = max(n, 0)
    if p.cls == 'mfma':
        if c.cls == 'mfma':
            if pd & set(c.ab): n = max(n, XDL_D_USE[p.passes])
            ov = pd & set(c.srcc)
            if ov:
                same = (sorted(p.defs) == sorted(c.srcc)) and p.op == c.op
                if not same: n = max(n, XDL_C_OVL[p.passes])
            if (pd & cd) and not ov: n = max(n, XDL_C_OVL[p.passes])
        elif c.cls in ('valu', 'trans', 'ds', 'vmem', 'vmem_lds'):
            if pd & (cu | cd): n = max(n, XDL_D_USE[p.passes])
            if cvalu and set(p.srcc) & cd: n = max(n, XDL_C_WAR[p.passes])
    if p.wide_store and set(p.wide_store) & cd:
        n = max(n, 2 if cvalu else 1)
    if p.cls == 'salu' and ('s', 124) in sd and c.cls == 'vmem_lds': n = max(n, 1)
    return n

class Asm:
    def __init__(self):
        self.out = []
        self.dsq = []
        self.vmq = []
        self.nops = 0
        self.vm_total = 0
    def raw(self, text):
        for line in text.split('\n'):
            I = Ins(); I.text = line; I.op = ''; I.cls = 'none'; I.defs = []; I.uses = []; I.srcc = []; I.ab = []
            I.passes = 0; I.dpp = False; I.wide_store = []; I.states = 0
            self.out.append(I)
    def __call__(self, text, tag=None):
        for line in text.split('\n'):
            if not line.strip(): continue
            I = parse(line)
            if I.cls not in ('label', 'none'):
                dist = 0; need = 0
                for p in reversed(self.out):
                    if p.cls in ('none',): continue
                    if p.cls == 'label': continue
                    ns = need_states(p, I)
                    if ns > dist: need = max(need, ns - dist)
                    dist += p.states
                    if dist >= 24: break
                while need > 0:
                    k = min(need, 16)
                    self.out.append(parse(f'    s_nop {k-1}')); self.nops += k
                    need -= k
                if I.cls == 'ds': self.dsq.append(tag)
                if I.cls in ('vmem', 'vmem_lds') and not I.op.startswith('buffer_inv') and not I.op.startswith('buffer_wbl2'):
                    self.vmq.append(tag); self.vm_total += 1
                if not line.startswith(' '): I.text = '    ' + line
            self.out.append(I)
    def label(self, name):
        self(name + ':')
    def flush_hazards(self, n=12):
        self(f's_nop {n-1}')
    def wait_ds(self, tag):
        idx = [i for i, t in enumerate(self.dsq) if t == tag]
        if not idx: return
        n = len(self.dsq) - 1 - idx[-1]
        self(f's_waitcnt lgkmcnt({min(n,15)})')
        self.dsq = self.dsq[len(self.dsq) - min(n, 15):] if n > 0 else []
    def wait_vm(self, tag):
        idx = [i for i, t in enumerate(self.vmq) if t == tag]
        if not idx: return
        n = len(self.vmq) - 1 - idx[-1]
        assert n <= 63
        self(f's_waitcnt vmcnt({n})')
        self.vmq = self.vmq[len(self.vmq) - n:] if n > 0 else []
    def wait_all(self, ds=True, vm=True):
        s = []
        if vm: s.append('vmcnt(0)'); self.vmq = []
        if ds: s.append('lgkmcnt(0)'); self.dsq = []
        self('s_waitcnt ' + ' '.join(s))
    def text(self):
        return '\n'.join(i.text for i in self.out) + '\n'

def vr(base, n=1, f='v'):
    return f'{f}{base}' if n == 1 else f'{f}[{base}:{base+n-1}]'
```

```python
import struct, math
from asmlib import Asm, vr

OFF_PART = 0x100000
OFF_MEM  = 0x180000
OFF_KMVM = 0x400000
OFF_KX   = 0x1000000
OFF_VX   = 0x2000000
OFF_QX   = 0x3000000
OFF_DUM  = 0x280000
OFF_TIM  = 0x300000
WS_BYTES = 0x10000000
L_MEM = 0
L_KX = 8192
L_VX = 16384
L_D = 24576
L_K = 26624
L_O = 30720
L_W = 32768
DBG_RANK0 = 0
DBG_READY = 33
DBG_RST = 34
DBG_KVA = 35
DBG_QH = 8
SPIN_MAX = 200000

def fbits(x): return struct.unpack('<I', struct.pack('<f', x))[0]

sWS, sDBG = 4, 8
sCk = 12
sWave, sH, sStep, sT0, sT1, sSpin = 16, 17, 18, 19, 20, 21
sPartSt0, sPartSt1, sRed, sRst, sGat, sPub, sPubRst = 22, 23, 24, 26, 27, 28, 29
sKXd, sVXd, sPf, sKM, sC = 30, 31, 32, 33, 34
sA = [36, 37, 38, 39]
sGatB, sRedB, sPubB = 40, 41, 43
sE, sKMp, sGat2, sChk, sNextChk = 25, 35, 24, 38, 36
sOnes = 44
sRt, sRt0 = 46, 48
sVal = 50
sWQ, sWK, sWV, sWO, sM0 = 52, 56, 60, 64, 68
sMask = [72, 74, 76, 78]
sMKX, sMVX, sHb, sWb, sFail = 81, 82, 83, 84, 85
NST = 10
sSt = 52
sAcc = 86
sPg, sPr, sThr, sLast = 96, 97, 98, 99
THR = 30.0
RDEPTH = 3
RED_DELAY = [0, 2, 12, 16]
RCUT = [4, 4, 16, 20]
PRE_DELAY = [0, 0, 0, 0]
DMA0 = 18
REFW = 0
B1SLOT = 14
KM0 = 28
GSL = [(2, None, 16), (2, None, 16)]
KMIDLE = 0
LAG = [6, 3]
NV = 4
BLEAD = 5
RSLOT = [17, None, None, None]
RMID = [12, 12, 99, 99]
CHKPRE = 0
RD2 = None
STLAST = 0
OV = [0,0,0,0,1,2,2,2,2,2,2,2,2,2,2,2]
OMODE = 2
OV2 = [0]*12 + [1, 2, 2, 2]
GDEPTH = 2
HOLD = None
MERGE = (21, 13)
G_DELAY = [3, 3, 0, 0]
G_GAP = 4
DIAG = 0
NO_PF = 0
NO_KM = 0
KVINC = 262144
KMINC = 131072
KMPOS = 1
LIGHT = 0
PROF = 0
NCU = 32
NOHOP = 0
DROP = ()
KVF = ''
KMF = ''
vWl, vXl, vIdx, vPst, vQr, vMw, vQw, vPub, vOw, vOr, vWh, vSel = range(12)
vGat = vRed = vXl
vT = [12, 13, 14, 15]
vKx, vNeg = 12, 13
MEM = 16; WBA = 48; WBB = 56; QT = 64; KXB = 80; AQ = 96; AK = 104; AV = 112; KV = 120; PM = 124

def build_frag_map():
    lds_units = [('o', 0, 0), ('o', 0, 1), ('q', 0, 0), ('k', 1, 0)]
    allu = [(m, x, y) for m in 'oqkv' for x in range(2) for y in range(2)]
    regu = [c for c in allu if c not in lds_units]
    def frs(c):
        m, x, y = c
        if m == 'o': return [(m, 4*y + n, x, n) for n in range(4)]
        return [(m, n & 1, 4*x + 2*(n >> 1) + y, n) for n in range(4)]
    loc = {}
    slot = 0
    for c in regu:
        for (m, tile, t, n) in frs(c):
            if slot < 32: loc[(m, tile, t)] = ('a', slot * 8)
            else: loc[(m, tile, t)] = ('v', 128 + (slot - 32) * 8)
            slot += 1
    assert slot == 48
    li = 0
    for c in lds_units:
        for (m, tile, t, n) in frs(c):
            loc[(m, tile, t)] = ('l', li); li += 1
    return regu + lds_units, loc, frs

def gen_chain(A, timing=False, kv_flags='', nsteps=64, mega=False):
    chunks, loc, frs = build_frag_map()
    W = f's[{sWS}:{sWS+3}]'
    def stamp(i, force=False):
        if LIGHT: return
        if PROF and 1 <= i <= 8: return
        if DIAG and not force:
            if 1 <= i <= 7: return
            if i == 8: i = 1
        if timing: A(f's_memtime s[{sSt+2*i}:{sSt+2*i+1}]')
    def E(x):
        if isinstance(x, tuple):
            tg = x[1][0] if isinstance(x[1], tuple) else x[1]
            if tg in DROP: return
            A(x[0], x[1])
        elif callable(x): x()
        else: A(x)
    def EL(l):
        for x in l: E(x)
    def wl_ins(li, hh, reg, write=False):
        off = (li // 4) * 32768 + (li % 4) * 2048 + hh * 1024
        ad = vWl if off < 65536 else vWh
        if write: return f'ds_write_b128 v{ad}, v[{reg}:{reg+3}] offset:{off % 65536}'
        return f'ds_read_b128 v[{reg}:{reg+3}], v{ad} offset:{off % 65536}'
    A(f'''
v_and_b32 v127, 63, v0                       ; lane
v_and_b32 v126, 15, v127                     ; j / i / n
v_lshrrev_b32 v125, 4, v127                  ; g
v_lshlrev_b32 v{vXl}, 4, v127                ; lane*16
s_lshl_b32 s{sWb}, s{sWave}, 13
v_add_u32 v{vWl}, s{sWb}, v{vXl}
v_add_u32 v{vWl}, {L_W}, v{vWl}
v_add_u32 v{vWh}, 65536, v{vWl}
s_lshl_b32 s{sT0}, s{sWave}, 11
v_add_u32 v{vMw}, s{sT0}, v{vXl}
s_lshl_b32 s{sHb}, s{sH}, 13                 ; h*8192
s_add_u32 s{sGatB}, s{sT0}, {OFF_MEM}
s_add_u32 s{sRedB}, s{sHb}, s{sT0}
s_add_u32 s{sRedB}, s{sRedB}, {OFF_PART}
s_lshl_b32 s{sT0}, s{sH}, 6
s_add_u32 s{sPubB}, s{sT0}, s{sGatB}
v_and_b32 v121, 1, v127                      ; bit0
v_bfe_u32 v122, v127, 1, 1                   ; bit1
v_bfe_u32 v123, v127, 2, 1                   ; bit2
v_bfe_u32 v124, v127, 3, 1                   ; bit3
v_and_b32 v120, 3, v127
v_bfe_u32 v116, v127, 4, 1
v_bfe_u32 v115, v127, 5, 1
v_lshlrev_b32 v{vPub}, 5, v122
v_lshl_add_u32 v{vPub}, v115, 4, v{vPub}
v_lshl_add_u32 v{vPub}, v121, 3, v{vPub}
v_lshl_add_u32 v{vPub}, v116, 2, v{vPub}
v_mov_b32 v64, -1
v_mov_b32 v65, -1
v_mov_b32 v66, -1
v_mov_b32 v67, -1
''')
    A(f'buffer_store_dwordx4 v[64:67], v{vXl}, {W}, s{sRedB} offen', 'rst')
    A(f'buffer_store_dwordx4 v[64:67], v{vXl}, {W}, s{sRedB} offen offset:1024', 'rst')
    A('v_lshrrev_b32 v119, 3, v127\nv_lshlrev_b32 v119, 13, v119\nv_and_b32 v118, 7, v127\nv_lshl_add_u32 v119, v118, 4, v119')
    A(f's_andn2_b32 s{sT1}, s{sPubB}, 64')
    for sl in range(8):
        A(f's_add_u32 s{sT0}, s{sT1}, {sl << 16}')
        A(f'buffer_store_dwordx4 v[64:67], v119, {W}, s{sT0} offen', 'rst')
    A(f'''
v_mov_b32 v119, 0x4444
v_mov_b32 v118, 0xeeee
v_cmp_eq_u32 s[{sVal}:{sVal+1}], 1, v122
v_cndmask_b32 v{vIdx}, v119, v118, s[{sVal}:{sVal+1}]
v_lshrrev_b32 v119, 2, v126
; vPst = (8w + 4jh + g)*8192 + h*64 + (j%8)*8
v_lshl_add_u32 v118, v124, 2, v125
v_lshlrev_b32 v118, 13, v118
v_and_b32 v117, 7, v127
v_lshl_add_u32 v118, v117, 3, v118
s_lshl_b32 s{sT0}, s{sWave}, 16
s_lshl_b32 s{sT1}, s{sH}, 6
s_add_u32 s{sT0}, s{sT0}, s{sT1}
v_add_u32 v{vPst}, s{sT0}, v118
v_lshrrev_b32 v{vQr}, 1, v{vXl}
v_lshlrev_b32 v118, 4, v116
v_xor_b32 v{vQr}, v{vQr}, v118
v_lshl_add_u32 v118, v119, 1, v121
v_lshlrev_b32 v118, 4, v118
v_lshl_add_u32 v117, v125, 1, v122
v_lshl_add_u32 v117, v117, 7, v118
v_add_u32 v{vOr}, {L_O}, v117
v_lshl_add_u32 v117, v125, 7, v118
s_lshl_b32 s{sT0}, s{sWave}, 9
v_add_u32 v117, s{sT0}, v117
v_mov_b32 v116, {L_D}
v_mov_b32 v115, {L_O}
v_cndmask_b32 v116, v116, v115, s[{sVal}:{sVal+1}]
v_add_u32 v{vOw}, v116, v117
; vQw = L_K + (32w + j)*32 + g*8
v_lshlrev_b32 v117, 5, v126
v_lshl_add_u32 v117, v125, 3, v117
v_lshlrev_b32 v116, 4, v123
v_xor_b32 v117, v117, v116
s_lshl_b32 s{sT0}, s{sWave}, 10
s_add_u32 s{sT0}, s{sT0}, {L_K}
v_add_u32 v{vQw}, s{sT0}, v117
v_mov_b32 v117, 0x3f80
v_mov_b32 v116, 0x3f800000
v_cmp_eq_u32 vcc, 1, v124
v_cndmask_b32 v{vSel}, v117, v116, vcc
v_lshl_add_u32 v117, v123, 1, v120
v_lshl_add_u32 v117, v122, 3, v117
s_mov_b32 s{sC}, {fbits((128 ** -0.5) * math.log2(math.e)):#x}
s_mov_b32 s{sOnes}, 0x3f803f80
s_mov_b32 s{sOnes+1}, 0x3f803f80
''')
    for k in range(4):
        A(f'v_cmp_eq_u32 s[{sMask[k]}:{sMask[k]+1}], {k}, v117')
    A(f'''
v_bfe_u32 v116, v127, 4, 1
v_bfe_u32 v115, v127, 5, 1
; DMA source: position row p = l/8 (bits b3,b4,b5), chunk y = l%8 ; swz low bit = b5
v_and_b32 v114, 7, v127
v_lshlrev_b32 v113, 1, v115
v_xor_b32 v114, v114, v113
v_lshlrev_b32 v114, 4, v114
v_lshl_add_u32 v113, v124, 1, v116
v_lshl_add_u32 v113, v115, 2, v113
v_lshl_add_u32 v112, v113, 13, v114
s_lshl_b32 s{sT0}, s{sH}, 8
s_lshr_b32 s{sT1}, s{sWave}, 1
s_lshl_b32 s{sT1}, s{sT1}, 7
s_add_u32 s{sT0}, s{sT0}, s{sT1}
s_and_b32 s{sT1}, s{sWave}, 1
s_lshl_b32 s{sT1}, s{sT1}, 20
s_add_u32 s{sT0}, s{sT0}, s{sT1}
v_add_u32 v112, s{sT0}, v112
v_xor_b32 v111, 64, v112
v_lshrrev_b32 v113, 3, v127
v_lshl_add_u32 v110, v113, 10, v114
s_lshl_b32 s{sT0}, s{sH}, 17
s_lshl_b32 s{sT1}, s{sWave}, 8
s_add_u32 s{sT0}, s{sT0}, s{sT1}
v_add_u32 v110, s{sT0}, v110
v_xor_b32 v109, 64, v110
; qkv read lane part: (16b + 8(gB/2) + 4half + gB%2)*128 + c*8 , b=b2 half=b3 gB%2=b4 gB/2=b5 ; swz = half + 2b
v_lshl_add_u32 v113, v124, 2, v116
v_lshl_add_u32 v113, v115, 3, v113
v_lshl_add_u32 v113, v123, 4, v113
v_lshlrev_b32 v113, 7, v113
v_lshl_add_u32 v113, v120, 3, v113
v_lshl_add_u32 v114, v123, 1, v124
s_and_b32 s{sT0}, s{sWave}, 1
s_lshl_b32 s{sT1}, s{sT0}, 1
v_xor_b32 v114, s{sT1}, v114
v_lshl_add_u32 v113, v114, 5, v113
s_lshr_b32 s{sT1}, s{sWave}, 1
s_lshl_b32 s{sT0}, s{sT1}, 14
v_add_u32 v100, s{sT0}, v113
v_xor_b32 v101, 32, v100
v_xor_b32 v102, 4096, v100
v_xor_b32 v103, 4096, v101
; o read lane part: (16(gB%2) + 8(gB/2) + 4half + b)*128 + c*8 ; swz = half + 2(gB%2)
v_lshl_add_u32 v113, v124, 2, v123
v_lshl_add_u32 v113, v115, 3, v113
v_lshl_add_u32 v113, v116, 4, v113
v_lshlrev_b32 v113, 7, v113
v_lshl_add_u32 v113, v120, 3, v113
v_lshl_add_u32 v114, v116, 1, v124
v_lshl_add_u32 v113, v114, 5, v113
v_add_u32 v96, s{sWb}, v113
v_xor_b32 v97, 32, v96
v_xor_b32 v98, 64, v96
v_xor_b32 v99, 96, v96
''')
    srd = {'q': sWQ, 'k': sWK, 'v': sWV, 'o': sWO}
    def slot_base(i): return ((i + 4) % 5) * 32768
    def issue_chunk(i):
        m, x, y = chunks[i]
        for j in range(8):
            A(f's_add_u32 m0, s{sWb}, {slot_base(i) + j*1024}')
            if m == 'o':
                A(f's_mov_b32 s{sT0}, {(64*x + 8*j)*1024 + y*128}')
                A(f'buffer_load_dwordx4 v{109 if j & 2 else 110}, s[{srd[m]}:{srd[m]+3}], s{sT0} offen lds', ('ch', i))
            else:
                A(f's_mov_b32 s{sT0}, {(256*y + 64*x + 8*j)*8192}')
                A(f'buffer_load_dwordx4 v{111 if j & 2 else 112}, s[{srd[m]}:{srd[m]+3}], s{sT0} offen lds', ('ch', i))
    A('s_barrier')
    for i in range(5): issue_chunk(i)
    for i in range(16):
        m = chunks[i][0]
        for n in range(4): A(f'v_add_u32 v{92+n}, {slot_base(i)}, v{(96 if m == "o" else 100) + n}')
        A.wait_vm(('ch', i))
        if i == 0:
            A(f'v_mov_b32 v106, {DBG_READY*4}\nv_mov_b32 v105, 1\ns_mov_b64 exec, 1')
            A(f'buffer_atomic_add v105, v106, s[{sDBG}:{sDBG+3}], 0 offen', 'sig')
            A('s_mov_b64 exec, -1')
        if m != 'o': A('s_barrier')
        fl = frs(chunks[i])
        for (m, tile, t, n) in fl:
            kind, base = loc[(m, tile, t)]
            if kind == 'l': f, b0 = 'v', 16 + n * 8
            else: f, b0 = kind, base
            for rho in range(4):
                hi, qq = rho >> 1, rho & 1
                off = (32*hi + 2*qq)*128 if m == 'o' else hi*8192 + qq*256
                A(f'ds_read_b64_tr_b16 {f}[{b0+2*rho}:{b0+2*rho+1}], v{92+n} offset:{off}', 'tr')
        A.wait_all(vm=False)
        if m != 'o': A('s_barrier')
        if i + 5 < 16: issue_chunk(i + 5)
        if i >= 12:
            for (m, tile, t, n) in fl:
                li = loc[(m, tile, t)][1]
                assert L_W + (li // 4) * 32768 == slot_base(i)
                for hh in range(2):
                    A(wl_ins(li, hh, 16 + n*8 + 4*hh, True), 'w')
            A.wait_all(vm=False)
    A('s_barrier')
    A(f'''
s_lshl_b32 s{sT0}, s{sWave}, 11
s_add_u32 s{sMKX}, s{sT0}, {L_KX}
s_add_u32 s{sMVX}, s{sT0}, {L_VX}
s_add_u32 s{sT0}, s{sT0}, s{sHb}
s_add_u32 s{sKXd}, s{sT0}, {OFF_KX}
s_add_u32 s{sVXd}, s{sT0}, {OFF_VX}
s_lshl_b32 s{sT0}, s{sH}, 12
s_lshl_b32 s{sT1}, s{sWave}, 10
s_add_u32 s{sT0}, s{sT0}, s{sT1}
s_add_u32 s{sKM}, s{sT0}, {OFF_KMVM}
s_mov_b32 s{sFail}, 0
''')
    dkx = [(f'buffer_load_dwordx4 v{vXl}, {W}, s{sKXd} offen {kv_flags} {KVF} lds', 'dkx'),
           (f'buffer_load_dwordx4 v{vXl}, {W}, s{sKXd} offen offset:1024 {kv_flags} {KVF} lds', 'dkx'), f's_add_u32 s{sKXd}, s{sKXd}, {KVINC}']
    dvx = [(f'buffer_load_dwordx4 v{vXl}, {W}, s{sVXd} offen {kv_flags} {KVF} lds', 'dvx'),
           (f'buffer_load_dwordx4 v{vXl}, {W}, s{sVXd} offen offset:1024 {kv_flags} {KVF} lds', 'dvx'), f's_add_u32 s{sVXd}, s{sVXd}, {KVINC}']
    def wait_cnt(lbl, word, target, va, vb):
        A(f'v_mov_b32 v{va}, 0')
        A(f's_mov_b32 s{sSpin}, 0')
        A.label(lbl)
        A(f'buffer_load_dword v{vb}, v{va}, s[{sDBG}:{sDBG+3}], 0 offen offset:{word*4} sc1')
        A(f's_add_u32 s{sSpin}, s{sSpin}, 1')
        A(f's_cmp_gt_u32 s{sSpin}, {SPIN_MAX}')
        A(f's_cbranch_scc1 {lbl}_x')
        A('s_waitcnt vmcnt(0)')
        A(f'v_cmp_gt_u32 vcc, {target}, v{vb}')
        A(f's_cbranch_vccz {lbl}_x')
        A('s_sleep 4')
        A(f's_branch {lbl}')
        A.label(lbl + '_x')
        A('s_waitcnt vmcnt(0)')
        A(f's_mov_b32 s{sSpin}, 0')
        A.vmq = []
    if mega:
        if timing: A(f's_memrealtime s[{sSt+4}:{sSt+5}]'); A('s_waitcnt lgkmcnt(0)'); A(f's_sub_u32 s{sLast}, s{sSt+4}, s{sRt0}')
        wait_cnt('L_ch_wkv', DBG_KVA, 128, 105, 106)
    A(f's_mov_b32 m0, s{sMKX}'); EL(dkx)
    A(f's_mov_b32 m0, s{sMVX}'); EL(dvx)
    A(f'''
v_lshlrev_b32 v100, 10, v115
v_lshl_add_u32 v100, v120, 2, v100
v_lshl_add_u32 v100, v116, 1, v100
s_and_b32 s{sT0}, s{sH}, 3
s_lshl_b32 s{sT0}, s{sT0}, 11
s_lshr_b32 s{sT1}, s{sH}, 3
s_lshl_b32 s{sT1}, s{sT1}, 8
s_add_u32 s{sT0}, s{sT0}, s{sT1}
s_and_b32 s{sT1}, s{sH}, 4
s_lshl_b32 s{sT1}, s{sT1}, 2
s_add_u32 s{sT0}, s{sT0}, s{sT1}
s_lshl_b32 s{sT1}, s{sWave}, 6
s_add_u32 s{sT0}, s{sT0}, s{sT1}
''')
    A(f'buffer_load_ushort v101, v100, s[{sM0}:{sM0+3}], s{sT0} offen', 'm0')
    A(f'buffer_load_ushort v102, v100, s[{sM0}:{sM0+3}], s{sT0} offen offset:32', 'm0')
    A(f'v_mov_b32 v106, {DBG_READY*4}')
    A(f's_mov_b32 s{sSpin}, 0')
    A.label('L_ch_rdy')
    A(f'buffer_load_dword v105, v106, s[{sDBG}:{sDBG+3}], 0 offen sc1', 'rdy')
    A(f's_add_u32 s{sSpin}, s{sSpin}, 1')
    A(f's_cmp_gt_u32 s{sSpin}, {SPIN_MAX}')
    A('s_cbranch_scc1 L_ch_fail')
    A.wait_all(ds=False)
    A('v_cmp_gt_u32 vcc, 128, v105')
    if not NOHOP: A('s_cbranch_vccnz L_ch_rdy')
    A('v_lshl_or_b32 v101, v102, 16, v101')
    A(f'buffer_store_dword v101, v{vPub}, {W}, s{sPubB} offen')
    A(f'v_mov_b32 v{PM+1}, 0\nv_mov_b32 v{PM+2}, 0\ns_mov_b32 s{sStep}, 0')

    def wop(m, tile, t, buf=None):
        kind, base = loc[(m, tile, t)]
        if kind == 'l':
            assert buf is not None, (m, tile, t)
            return f'v[{buf}:{buf+7}]'
        return f'{kind}[{base}:{base+7}]'
    def ldw_i(m, tile, t, buf):
        kind, li = loc[(m, tile, t)]; assert kind == 'l'
        return [(wl_ins(li, 0, buf), ('w', buf)), (wl_ins(li, 1, buf + 4), ('w', buf))]
    acc = {'q': AQ, 'k': AK, 'v': AV}
    def sm(m, tile, t, buf=None):
        if buf is not None: A.wait_ds(('w', buf))
        d = acc[m] + 4 * tile
        A(f'v_smfmac_f32_16x16x64_bf16 v[{d}:{d+3}], v[{MEM+4*t}:{MEM+4*t+3}], {wop(m, tile, t, buf)}, v{vIdx}')
    def kxrd2(kt, ks):
        b = (KXB if kt == 0 else WBA) + 4 * ks
        return (f'ds_read_b128 v[{b}:{b+3}], v{vXl} offset:{L_KX + (2*ks+kt)*1024}', ('kx', kt, ks))
    pw = ldw_i('q', 0, 0, QT) + ldw_i('q', 1, 0, QT + 8) + ldw_i('q', 0, 2, WBA) + ldw_i('q', 1, 2, WBB)
    def pre_zero(lo, hi):
        for r in range(lo, hi, 2): A(f'v_mov_b64 v[{r}:{r+1}], 0')
    A(f's_mov_b32 s{sE}, 0'); A(f's_mov_b32 s{sNextChk}, 7')
    if mega: wait_cnt('L_ch_wrs', DBG_RST, 224, 105, 106)
    A(f's_mov_b32 s{sGat}, {OFF_MEM}'); A(f's_mov_b32 s{sGat2}, {OFF_MEM + 4096}')
    A(f's_add_u32 s{sPub}, s{sPubB}, 8192'); A(f's_add_u32 s{sPubRst}, s{sPubB}, {2*8192}')
    A(f's_mov_b64 s[{sChk}:{sChk+1}], s[{sVal}:{sVal+1}]')
    A(f's_mov_b32 s{sPartSt0}, {OFF_PART}'); A(f's_mov_b32 s{sPartSt1}, {OFF_PART + 4096}')
    A(f's_mov_b32 s{sKMp}, {OFF_DUM}')
    A(f's_mov_b32 s{sThr+2}, {fbits(2.0 ** -THR):#x}'); A(f's_mov_b32 s{sThr}, {fbits(2.0 ** THR):#x}')
    A(f's_mov_b32 m0, s{sMVX}')
    A.wait_all(ds=False)
    A('s_barrier')
    EL(pw); pre_zero(AQ, AV + 8)
    def gl(lv, fl=''):
        sg = sGat if lv < 2 else sGat2
        return [(f'buffer_load_dwordx4 v[{MEM+8*lv+4*i}:{MEM+8*lv+4*i+3}], v{vXl}, {W}, s{sg} offen offset:{(lv%2)*2048 + i*1024} {fl}', ('g', lv)) for i in range(2)]
    for lv in range(4): EL(gl(lv, 'sc1'))
    A(f'buffer_load_dword v{vNeg}, v{vPub}, {W}, s{sPub} offen sc1')
    A.wait_all()
    if timing:
        for i in range(NST): A(f's_mov_b32 s{sAcc+i}, 0')
        A(f's_memtime s[{sSt}:{sSt+1}]'); A('s_waitcnt lgkmcnt(0)')
        for i in range(1, NST): A(f's_mov_b32 s{sSt+2*i}, s{sSt}')
        A(f's_mov_b32 s{sPg}, 0'); A(f's_mov_b32 s{sPr}, 0')
        if not mega: A(f's_mov_b32 s{sLast}, s{sSt}')
        A(f's_memrealtime s[{sRt}:{sRt+1}]'); A('s_waitcnt lgkmcnt(0)')
    for wv in range(1, 4):
        A(f's_cmp_eq_u32 s{sWave}, {wv}'); A(f's_cbranch_scc1 L_ch_step{wv}')
    def post(a, dst, scale=False):
        r = [f'v_add_f32 v{a}, v{a}, v{a+2}', f'v_add_f32 v{a+1}, v{a+1}, v{a+3}']
        if scale: r += [f'v_mul_f32 v{a}, s{sC}, v{a}', f'v_mul_f32 v{a+1}, s{sC}, v{a+1}']
        return r + [f'v_cvt_pk_bf16_f32 v{dst}, v{a}, v{a+1}']
    def kmst(sreg): return (f'buffer_store_dwordx4 v[{KV}:{KV+3}], v{vXl}, {W}, s{sreg} offen {kv_flags} {KMF}', 'km')

    def loop(wv):
        own = wv
        early = wv < 2
        pre_g = early
        sec = wv + 2
        tailq = ['pub'] + ([('g', own)] * 2 * (GDEPTH - 1) if pre_g else (['km'] if KMPOS == 1 and KMIDLE else []))
        A.raw('.p2align 6')
        A.label(f'L_ch_step{wv}')
        A.dsq = []; A.vmq = list(tailq)
        M0 = MEM + 8 * own
        wd = lambda t: (lambda: A.wait_ds(t))
        cm = lambda lv, i, dst: f'v_cmp_u_f32 {dst}, v{MEM+8*lv+i}, v{MEM+8*lv+4+i}'
        c1 = f's[{sCk}:{sCk+1}]'; c2 = f's[{sCk+2}:{sCk+3}]'
        def mwr(lv): return [(f'ds_write_b128 v{vXl}, v[{MEM+8*lv+4*i}:{MEM+8*lv+4*i+3}] offset:{L_MEM + lv*2048 + i*1024}', ('mw', lv)) for i in range(2)]
        mw = mwr(own)
        def mr(lv): return [(f'ds_read_b128 v[{MEM+8*lv+4*i}:{MEM+8*lv+4*i+3}], v{vXl} offset:{L_MEM + lv*2048 + i*1024}', ('mem', 2*lv+i)) for i in range(2)]
        gb = [(x[0], 'gb') for x in gl(own, 'sc1')]
        def tstat():
            if timing and not LIGHT:
                A('s_waitcnt lgkmcnt(0)'); A.dsq = []
                A(f's_sub_u32 s{sT0}, s{sSt}, s{sLast}'); A(f's_add_u32 s{sAcc+NST-1}, s{sAcc+NST-1}, s{sT0}')
        if early:
            A.label(f'L_ch_g{wv}')
            EL(gb)
            A(f's_add_u32 s{sSpin}, s{sSpin}, 1')
            A(f's_cmp_gt_u32 s{sSpin}, {SPIN_MAX}')
            A('s_cbranch_scc1 L_ch_fail')
            A(f's_waitcnt vmcnt({2*(GDEPTH-1)})'); A.vmq = ['gb', 'gb'] * (GDEPTH - 1)
            A(cm(own, 0, 'vcc'))
            A(f's_cbranch_vccnz L_ch_g{wv}' if not NOHOP else 's_nop 0')
            EL(mw)
            stamp(0)
        else:
            A('s_barrier')
            EL(mr(0) + mr(1))
            stamp(0); tstat()
        la, lb = (3, 2) if (wv == 1 and MERGE) else (2, 3)
        k6 = ldw_i('k', 0, 2*lb, QT) + ldw_i('k', 1, 2*lb, QT + 8)
        k4 = ldw_i('k', 0, 2*la, WBA) + ldw_i('k', 1, 2*la, WBB)
        qp0 = post(AQ, AQ, True); qp1 = post(AQ + 4, AQ + 4, True)
        kp0 = post(AK, KV); kp1 = post(AK + 4, KV + 1)
        frd = [(f'ds_read_b64_tr_b16 v[{QT+4*ks+2*hi}:{QT+4*ks+2*hi+1}], v{vQr} offset:{L_K + ks*1024 + hi*512}', ('f', ks)) for ks in range(4) for hi in range(2)]
        VX0 = MEM; VX1 = MEM + 4
        qbuf = {(0, 0): QT, (1, 0): QT + 8, (0, 2): WBA, (1, 2): WBB}
        kbuf = {(0, 2*la): WBA, (1, 2*la): WBB, (0, 2*lb): QT, (1, 2*lb): QT + 8}
        def qk(lv):
            t = 2 * lv
            r = [('k', 0, t), ('k', 1, t), ('q', 0, t), ('q', 1, t), ('q', 0, t+1), ('q', 1, t+1), ('k', 0, t+1), ('k', 1, t+1)]
            if lv == la: r = [('q', 0, t), ('q', 1, t), ('k', 0, t), ('k', 1, t), ('q', 0, t+1), ('q', 1, t+1), ('k', 0, t+1), ('k', 1, t+1)]
            if lv == lb: r = [('q', 0, t), ('q', 0, t+1), ('q', 1, t), ('q', 1, t+1), ('k', 0, t), ('k', 0, t+1), ('k', 1, t), ('k', 1, t+1)]
            return [(m, tl, tt, (qbuf if m == 'q' else kbuf).get((tl, tt))) for (m, tl, tt) in r]
        vv = [('v', tl, t, None) for t in range(8) for tl in range(2)]
        first = [1, 0] if wv == 1 else [0, 1]
        order = qk(first[0]) + qk(first[1]) + vv[:NV] + qk(la) + qk(lb) + vv[NV:]
        L2 = 16 + NV; L3 = L2 + 8; KD = L3 + 7
        F = {i: [] for i in range(48)}
        V = {i: [] for i in range(48)}
        def fchk(slot, fail, ok=None):
            V[slot].append(cm(own, 1, c1)); V[slot+1].append(cm(own, 2, c2))
            F[slot+2].append(f's_or_b64 {c1}, {c1}, {c2}'); V[slot+2].append(cm(own, 3, 'vcc'))
            F[slot+3] += [f's_or_b64 {c1}, {c1}, vcc', f's_cbranch_scc1 {fail}' if not NOHOP else 's_nop 0']
        if early:
            fchk(0, f'L_ch_torn{wv}')
            if timing: F[4].append(f's_add_u32 s{sPg}, s{sPg}, s{sSpin}')
            F[4] += [wd(('mw', own)), tstat, 's_barrier'] + mr(1 - wv)
            g1, g2, cs = GSL[wv]
            F[g1] += gl(sec, 'sc1')
            if g2 is not None: F[g2] += [(x[0], 'gb') for x in gl(sec, 'sc1')]
            F[cs] += [lambda: A.wait_vm(('g', sec))]; V[cs].append(cm(sec, 0, 'vcc'))
            F[cs+1] += [f's_cbranch_vccnz L_ch_gf{wv}' if not NOHOP else 's_nop 0', lambda: A.label(f'L_ch_gk{wv}'), mwr(sec)[0]]
            F[cs+2].append(mwr(sec)[1])
        if MERGE:
            if early:
                assert GSL[wv][2] + 1 < L2 and GSL[wv][2] + 3 <= MERGE[0] <= L3 - 4
                F[MERGE[0]] += [wd(('mw', sec)), 's_barrier', mr(lb)[0]]; F[MERGE[0] + 1].append(mr(lb)[1])
            else:
                assert MERGE[1] <= L2 - 4
                F[MERGE[1]] += ['s_barrier']
                for i, x in enumerate(mr(2) + mr(3)): F[MERGE[1] + i].append(x)
        for lv, at in (((2, L2), (3, L3)) if not MERGE else ()):
            bs = at - BLEAD - (0 if early else LAG[lv - 2])
            if early and sec == lv:
                assert GSL[wv][2] + 3 <= bs, (wv, bs)
                F[bs] += [wd(('mw', lv)), 's_barrier']
            else:
                F[bs] += ['s_barrier', mr(lv)[0]]; F[bs+1].append(mr(lv)[1])
        posq0 = [i for i, x in enumerate(order) if x[:3] == ('q', 1, 0)][0]
        posq2 = [i for i, x in enumerate(order) if x[:3] == ('q', 1, 2)][0]
        def place(items, start):
            i = start
            for x in items:
                while any(isinstance(y, tuple) and y[0].startswith('ds_') for y in F[i]): i += 1
                F[i].append(x); i += 1
            return i
        place(k4, posq2 + 1)
        place(k6, posq0 + 1)
        place([kxrd2(0, ks) for ks in range(4)], 6)
        e = place([(f'ds_read_b128 v[{VX0}:{VX0+3}], v{vMw} offset:{L_VX}', 'vx'), (f'ds_read_b128 v[{VX1}:{VX1+3}], v{vMw} offset:{L_VX + 1024}', 'vx')], 20)
        F[19].insert(0, lambda: A.wait_vm('gb') if wv == 0 else None)
        place([kxrd2(1, ks) for ks in range(4)], L2 + 4)
        F[L3 - 1].append(lambda: stamp(1))
        for i in (1, 2, 3): F[L3 + i].append('s_nop 0')
        V[L3 + 3].append(qp0[0]); V[L3 + 4] += qp0[1:3]; V[L3 + 5] += qp0[3:5]; V[L3 + 6] += qp1[0:2]; V[L3 + 7] += qp1[2:4]
        F[KD].append(lambda: stamp(2))
        V[KD + 1] += [qp1[4], kp0[0]]
        F[KD + 2].append((f'ds_write2_b32 v{vQw}, v{AQ}, v{AQ+4} offset0:1 offset1:129', 'qw'))
        V[KD + 2] += kp0[1:3] + kp1 + [(f'ds_write2_b32 v{vQw}, v{KV}, v{KV+1} offset0:0 offset1:128', 'kw')]
        b2 = min(KD + 6, 46)
        F[b2] += [wd('kw'), 's_barrier', lambda: stamp(3)]
        i = b2
        for n in range(0, 8, 2):
            F[min(i, 47)] += frd[n:n+2]; i += 1
        V[46].append(f'v_mov_b64 v[{MEM+20}:{MEM+21}], s[{sOnes}:{sOnes+1}]'); V[47].append(f'v_mov_b64 v[{MEM+22}:{MEM+23}], s[{sOnes}:{sOnes+1}]')
        F[47] += [wd(('f', 1)), lambda: stamp(4)]
        if early:
            mark = []
            F[GSL[wv][2] + 1].append(lambda: mark.append(A.vm_total))
            F[KD + 3].append(lambda: A(f's_waitcnt vmcnt({A.vm_total - mark[0]})'))
        F[(L2 - BLEAD - LAG[0] if not MERGE else MERGE[1]) - 1].append(lambda: A.wait_vm('pub'))
        c0 = DMA0 + wv
        if KMPOS == 1 and (early or not KMIDLE): F[c0].insert(0, kmst(sKMp))
        F[c0 + 2].insert(0, (f'buffer_load_dword v{vNeg}, v{vPub}, {W}, s{sPubRst} offen sc1', 'warm'))
        d0 = max(e + 3, c0 + 4)
        F[d0][0:0] = [wd('vx'), dvx[0]]
        F[d0 + 4][0:0] = [dvx[1], f's_mov_b32 m0, s{sMKX}']
        for i, mm in enumerate(order):
            A.wait_ds(('mem', mm[2]))
            sm(*mm); EL(F[i]); EL(V[i])
        X = AQ
        ET = MEM + 8; MX = MEM + 18; TT = MEM + 19
        ONES = MEM + 20; LL = AV
        PX = AK + 4
        O0 = MEM + 24; O1 = MEM + 28
        def smm(d, a, ks):
            c = '0' if ks == 0 else f'v[{d}:{d+3}]'
            A(f'v_mfma_f32_16x16x32_bf16 v[{d}:{d+3}], v[{a}:{a+3}], v[{QT+4*ks}:{QT+4*ks+3}], {c}')
        vp = post(AV, KV + 2) + post(AV + 4, KV + 3)
        o01 = ldw_i('o', 0, 0, KXB) + ldw_i('o', 1, 0, KXB + 8)
        o23 = ldw_i('o', 2, 0, WBA) + ldw_i('o', 3, 0, WBB)
        o45 = ldw_i('o', 4, 0, QT) + ldw_i('o', 5, 0, QT + 8)
        o67 = ldw_i('o', 6, 0, KXB) + ldw_i('o', 7, 0, KXB + 8)
        ex = lambda i, src: f'v_exp_f32 v{ET+i}, v{src}'
        cvx = lambda n: f'v_cvt_pk_bf16_f32 v{PX+n}, v{ET+2*n}, v{ET+2*n+1}'
        cvm = [f'v_cvt_pk_bf16_f32 v{PM}, v{ET+8}, v{ET+9}', f'v_cvt_pk_bf16_f32 v{PM+3}, v{ET+8}, v{ET+9}']
        smm(X, KXB, 0); EL([dkx[0], f's_mov_b32 s{sKMp}, s{sKM}'])
        smm(X, KXB + 4, 1); EL([f's_add_u32 s{sKM}, s{sKM}, {KMINC}', wd(('f', 3))])
        smm(X, KXB + 8, 2); EL(vp[0:2])
        smm(X, KXB + 12, 3); EL(vp[2:4])
        smm(X + 4, WBA, 0); E(o01[0]); EL(vp[4:6])
        smm(X + 4, WBA + 4, 1); E(o01[1]); E(dkx[1])
        smm(X + 4, WBA + 8, 2); E(o01[2]); E(ex(0, X))
        smm(X + 4, WBA + 12, 3); E(o01[3]); E(ex(1, X + 1))
        smm(AK, QT, 0); E(o23[0]); E(ex(2, X + 2))
        smm(AK, QT + 4, 1); E(o23[1]); E(ex(3, X + 3))
        smm(AK, QT + 8, 2); E(o23[2]); E(ex(4, X + 4))
        smm(AK, QT + 12, 3); E(o23[3]); E(ex(5, X + 5))
        stamp(5)
        pvx = [f'v_mfma_f32_16x16x32_bf16 v[{LL}:{LL+3}], v[{ONES}:{ONES+3}], v[{PX}:{PX+3}], 0',
               f'v_mfma_f32_16x16x32_bf16 v[{O0}:{O0+3}], v[{VX0}:{VX0+3}], v[{PX}:{PX+3}], 0',
               f'v_mfma_f32_16x16x32_bf16 v[{O1}:{O1+3}], v[{VX1}:{VX1+3}], v[{PX}:{PX+3}], 0']
        pvm = [f'v_mfma_f32_16x16x16_bf16 v[{LL}:{LL+3}], v[{ONES}:{ONES+1}], v[{PM}:{PM+1}], v[{LL}:{LL+3}]',
               f'v_mfma_f32_16x16x16_bf16 v[{O0}:{O0+3}], v[{KV+2}:{KV+3}], v[{PM}:{PM+1}], v[{O0}:{O0+3}]',
               f'v_mfma_f32_16x16x16_bf16 v[{O1}:{O1+3}], v[{KV+2}:{KV+3}], v[{PM+2}:{PM+3}], v[{O1}:{O1+3}]']
        EL([ex(6, X + 6), ex(7, X + 7), cvx(0), cvx(1), cvx(2), cvx(3), ex(8, AK), f's_cmp_eq_u32 s{sStep}, {nsteps-1}'])
        E(pvx[0]); E(o45[0]); E(ex(9, AK + 1))
        E(pvx[1]); E(o45[1]); EL(cvm)
        E(pvx[2]); E(o45[2]); A('s_cbranch_scc1 L_ch_last')
        E(pvm[0]); E(o45[3]); A('s_nop 0')
        E(pvm[1]); EL([dkx[2], dvx[2]])
        E(pvm[2]); A('s_nop 1')
        A.label(f'L_ch_pvdone{wv}')
        A(f'v_cmp_ngt_f32 vcc, s{sThr}, v{LL}')
        A(f'v_cmp_nlt_f32 s[{sCk}:{sCk+1}], s{sThr+2}, v{LL}')
        A(f'v_rcp_f32 v{TT}, v{LL}')
        A(f's_or_b64 vcc, vcc, s[{sCk}:{sCk+1}]')
        OP = PX
        pm = lambda o: f'v_pk_mul_f32 v[{o}:{o+1}], v[{o}:{o+1}], v[{TT-1}:{TT}] op_sel:[0,1] op_sel_hi:[1,1]'
        if CHKPRE:
            A(f's_and_b64 vcc, vcc, s[{sChk}:{sChk+1}]')
            A(f's_cbranch_scc1 L_ch_slow{wv}' if not NOHOP else 's_nop 0')
        EL([pm(O0), pm(O0 + 2), pm(O1), pm(O1 + 2)])
        for tl, o in enumerate((O0, O1)):
            for i in (0, 1): A(f'v_cvt_pk_bf16_f32 v{OP+2*tl+i}, v{o+2*i}, v{o+2*i+1}')
        zmf = f'v_mfma_f32_32x32x1_2b_f32 v[{MEM}:{MEM+31}], v{PM+1}, v{PM+1}, 0'
        if CHKPRE: A(zmf)
        A(f'ds_write_b128 v{vOw}, v[{OP}:{OP+3}]', 'ow')
        stamp(6)
        if not CHKPRE:
            A(f's_and_b64 vcc, vcc, s[{sChk}:{sChk+1}]')
            A(f's_cbranch_scc1 L_ch_slow{wv}' if not NOHOP else 's_nop 0')
            A(zmf)
        A(f's_mov_b64 s[{sChk}:{sChk+1}], s[{sVal}:{sVal+1}]')
        A.wait_ds('ow')
        A('s_barrier')
        OA = AQ
        A(f'ds_read_b128 v[{OA}:{OA+3}], v{vOr}', ('oa', 0))
        A(f'ds_read_b128 v[{OA+4}:{OA+7}], v{vOr} offset:1024', ('oa', 1))
        SEL = AV + 4; RD = AV; RL = MEM + 24 if RSLOT[wv] is None else MEM
        if KMPOS == 2: E(kmst(sKMp))
        EL([f's_add_u32 s{sGat}, s{sGat}, 8192', f's_add_u32 s{sGat2}, s{sGat2}, 8192', f's_mov_b32 m0, s{sMVX}', 's_nop 0',
            f's_add_u32 s{sStep}, s{sStep}, 1', f's_mov_b32 s{sSpin}, 0', 's_nop 5'])
        A.wait_ds(('oa', 0))
        stamp(7)
        obuf = {(0, 0): KXB, (1, 0): KXB + 8, (2, 0): WBA, (3, 0): WBB, (4, 0): QT, (5, 0): QT + 8, (6, 0): KXB, (7, 0): KXB + 8}
        def so(tile, t):
            d = MEM + 4 * tile
            A(f'v_smfmac_f32_16x16x64_bf16 v[{d}:{d+3}], v[{OA+4*t}:{OA+4*t+3}], {wop("o", tile, t, obuf.get((tile, t)))}, v{vIdx}')
        PK = AK
        tag = lambda t: f'v_bfi_b32 v{PK+t}, 1, s{sE}, v{PK+t}'
        def pst(p): return (f'buffer_store_dwordx2 v[{PK+2*p}:{PK+2*p+1}], v{vPst}, {W}, s{sPartSt0 if p < 2 else sPartSt1} offen offset:{(p%2)*2048}', 'ps')
        P = [post(MEM + 4 * t, PK + t) for t in range(8)]
        def pk(t):
            d = MEM + 4 * t
            return [f'v_pk_add_f32 v[{d}:{d+1}], v[{d}:{d+1}], v[{d+2}:{d+3}]', f'v_cvt_pk_bf16_f32 v{PK+t}, v{d}, v{d+1}']
        RL2 = MEM + 16
        def rload(R=RL):
            A(f'buffer_load_dwordx4 v[{R}:{R+3}], v{vRed}, {W}, s{sRedB} offen sc1', ('r0', R))
            A(f'buffer_load_dwordx4 v[{R+4}:{R+7}], v{vRed}, {W}, s{sRedB} offen offset:1024 sc1', ('r1', R))
        def rproc(fail, R=RL):
            A.wait_vm(('r0', R))
            A(f'v_mfma_f32_16x16x32_bf16 v[{RD}:{RD+3}], v[{SEL}:{SEL+3}], v[{R}:{R+3}], 0')
            A(f'v_bitop3_b32 v{vT[2]}, v{R}, v{R+2}, s{sE} bitop3:0x7e')
            A.wait_vm(('r1', R))
            A(f'v_mfma_f32_16x16x32_bf16 v[{RD}:{RD+3}], v[{SEL}:{SEL+3}], v[{R+4}:{R+7}], v[{RD}:{RD+3}]')
            A(f'v_bitop3_b32 v{vT[3]}, v{R+4}, v{R+6}, s{sE} bitop3:0x7e')
            A(f'v_bitop3_b32 v{vT[2]}, v{vT[2]}, v{vT[3]}, 1 bitop3:0xa8')
            A(f'v_cmp_ne_u32 vcc, 0, v{vT[2]}')
            A(f's_cbranch_vccnz {fail}' if not NOHOP else 's_nop 0')
        mm_order = [(0, 0), (1, 0), (0, 1), (1, 1), (2, 0), (2, 1), (3, 0), (3, 1), (4, 0), (4, 1), (5, 0), (5, 1), (6, 0), (6, 1), (7, 0), (7, 1)]
        fixed = {1: [wd(('oa', 1))], 2: [o67[0]], 3: [o67[1]], 4: [o67[2]], 5: [o67[3]], 11: [wd(('w', KXB + 8))]}
        seq = P[0] + [tag(0)] + P[1] + [pst(0)] + P[2] + [tag(2)] + P[3] + [pst(1)] + P[4] + [tag(4)] + P[5] + [pst(2)]
        done = 0
        if OMODE == 2:
            fixed[7] = pk(0) + [tag(0)] + pk(1) + [pst(0)] + pk(2) + [tag(2)] + pk(3) + [pst(1)]
            seq = P[4] + [tag(4)] + P[5] + ([pst(2)] if HOLD is None else [])
        for n, mm in enumerate(mm_order):
            so(*mm); EL(fixed.get(n, []))
            if RSLOT[wv] == n: rload()
            k = OV[n] if OMODE != 2 else OV2[n]
            while seq and (k > 0 or isinstance(seq[0], tuple)):
                x = seq.pop(0)
                if not isinstance(x, tuple): k -= 1
                E(x); done += 1
        rest = []
        i = 0
        while i < len(seq):
            x = seq[i]
            t = [tt for tt in range(8) if x == P[tt][0]]
            if t: rest += pk(t[0]); i += 3
            else: rest.append(x); i += 1
        fin = rest + pk(6) + [tag(6)] + pk(7) + [pst(3)]
        if STLAST: fin = [x for x in fin if not isinstance(x, tuple)] + [x for x in fin if isinstance(x, tuple)]
        if HOLD is not None:
            fin = fin[:-1] + [f'v_cndmask_b32 v{SEL+k}, 0, v{vSel}, s[{sMask[k]}:{sMask[k]+1}]' for k in range(4)] + [f'v_mov_b64 v[{r}:{r+1}], 0' for r in range(AQ, AQ + 8, 2)]
            fin += ['s_nop 3'] * HOLD[wv] + ([rload] if RSLOT[wv] == 18 else []) + [pst(2), pst(3)]
        if RSLOT[wv] == 16: fin.insert(0, rload)
        if RSLOT[wv] == 17: fin.insert(len(fin) - 1, rload)
        EL(fin)
        stamp(8)
        zz = [f'v_cndmask_b32 v{SEL+k}, 0, v{vSel}, s[{sMask[k]}:{sMask[k]+1}]' for k in range(4)] + \
             [f'v_mov_b64 v[{r}:{r+1}], 0' for r in range(AQ, AK + 8, 2)]
        chores = (zz if HOLD is None else zz[8:]) + pw
        cut = min(len(chores), RCUT[wv])
        EL(chores[:cut])
        for _ in range(RED_DELAY[wv]): A('s_nop 3')
        if RSLOT[wv] is None: rload()
        EL(chores[cut:cut + RMID[wv]])
        if RD2 and RD2[wv] is not None:
            for _ in range(RD2[wv]): A('s_nop 3')
            rload(RL2)
        rproc(f'L_ch_r{wv}')
        A.label(f'L_ch_rok{wv}')
        for rot in (4, 8):
            for r in (RD, RD + 1):
                A(f'v_add_f32_dpp v{r}, v{r}, v{r} row_ror:{rot} row_mask:0xf bank_mask:0xf')
        A(f'v_cvt_pk_bf16_f32 v{PM}, v{RD}, v{RD+1}')
        A(f'buffer_store_dword v{PM}, v{vPub}, {W}, s{sPub} offen', 'pub')
        stamp(9)
        EL(chores[cut + RMID[wv]:])
        pre_zero(AV, AV + 8)
        EL([f's_add_u32 s{sPub}, s{sPub}, 8192', f's_add_u32 s{sPubRst}, s{sPubRst}, 8192', f's_xor_b32 s{sE}, s{sE}, 1'])
        A('s_waitcnt lgkmcnt(0)')
        if timing: A(f's_add_u32 s{sPr}, s{sPr}, s{sSpin}')
        if timing and not LIGHT:
            for i in range(NST - 1):
                A(f's_sub_u32 s{sT0}, s{sSt+2*(i+1)}, s{sSt+2*i}'); A(f's_add_u32 s{sAcc+i}, s{sAcc+i}, s{sT0}')
            A(f's_mov_b32 s{sLast}, s{sSt+2*(NST-1)}')
        A(f's_mov_b32 s{sSpin}, 0')
        if pre_g:
            for _ in range(G_DELAY[wv]): A('s_nop 3')
            for dd in range(GDEPTH - 1):
                EL(gl(own, 'sc1'))
                for _ in range(G_GAP): A('s_nop 3')
        elif KMPOS == 1 and KMIDLE:
            E(kmst(sKMp))
        assert A.vmq[-len(tailq):] == tailq, (A.vmq, tailq)
        if mega:
            A(f's_cmp_lg_u32 s{sStep}, s{sNextChk}')
            A(f's_cbranch_scc1 L_ch_step{wv}')
            A(f's_cmp_eq_u32 s{sStep}, 7'); A(f's_cbranch_scc0 L_ch_wc{wv}')
            A(f's_mov_b32 s{sNextChk}, 31')
            wait_cnt(f'L_ch_wb{wv}', DBG_KVA + 1, 96, vT[2], vT[3])
            A(f's_branch L_ch_step{wv}')
            A.label(f'L_ch_wc{wv}')
            wait_cnt(f'L_ch_wd{wv}', DBG_KVA + 2, 128, vT[2], vT[3])
        A(f's_branch L_ch_step{wv}')
        A.label(f'L_ch_r{wv}')
        if RD2 and RD2[wv] is not None:
            A.vmq = [('r0', RL2), ('r1', RL2)]
            rload()
            A(f's_add_u32 s{sSpin}, s{sSpin}, 1')
            A('s_nop 1')
            rproc(f'L_ch_rc{wv}', RL2)
            A('s_nop 3')
            A(f's_branch L_ch_rok{wv}')
            A.label(f'L_ch_rc{wv}')
            A.vmq = [('r0', RL), ('r1', RL)]
            rload(RL2)
        else:
            A.vmq = []
            rload()
        A(f's_add_u32 s{sSpin}, s{sSpin}, 1')
        A(f's_cmp_gt_u32 s{sSpin}, {SPIN_MAX}')
        A('s_cbranch_scc1 L_ch_fail')
        rproc(f'L_ch_r{wv}')
        A('s_nop 3')
        A(f's_branch L_ch_rok{wv}')
        if early:
            A.label(f'L_ch_torn{wv}')
            A('s_nop 7')
            pre_zero(AQ, AV + 8)
            A(f's_branch L_ch_g{wv}')
            A.label(f'L_ch_gf{wv}')
            A(f's_mov_b32 s{sSpin}, 0')
            if GSL[wv][1] is None: EL(gl(sec, 'sc1')); A('s_nop 15')
            A.label(f'L_ch_gp{wv}')
            EL(gl(sec, 'sc1'))
            A(f's_add_u32 s{sSpin}, s{sSpin}, 1')
            A(f's_cmp_gt_u32 s{sSpin}, {SPIN_MAX}')
            A('s_cbranch_scc1 L_ch_fail')
            A('s_waitcnt vmcnt(2)')
            A(cm(sec, 0, 'vcc'))
            A(f's_cbranch_vccnz L_ch_gp{wv}')
            if timing: A(f's_add_u32 s{sPg}, s{sPg}, 0x10000')
            A(f's_branch L_ch_gk{wv}')
        A.label(f'L_ch_slow{wv}')
        A(f's_mov_b64 s[{sChk}:{sChk+1}], 0')
        A('s_nop 7')
        A(f'v_max3_f32 v{MX}, v{X}, v{X+1}, v{X+2}')
        A(f'v_max3_f32 v{MX}, v{MX}, v{X+3}, v{X+4}')
        A(f'v_max3_f32 v{MX}, v{MX}, v{X+5}, v{X+6}')
        A(f'v_max3_f32 v{MX}, v{MX}, v{X+7}, v{AK}')
        A(f'v_max_f32 v{MX}, v{MX}, v{AK+1}')
        A(f'v_mov_b32 v{TT}, v{MX}')
        A(f'v_permlane32_swap_b32 v{MX}, v{TT}')
        A(f'v_max_f32 v{MX}, v{MX}, v{TT}')
        A(f'v_mov_b32 v{TT}, v{MX}')
        A(f'v_permlane16_swap_b32 v{MX}, v{TT}')
        A(f'v_max_f32 v{MX}, v{MX}, v{TT}')
        vs = [X + i for i in range(8)] + [AK, AK + 1]
        for n, r in enumerate(vs): A(f'v_sub_f32 v{ET+n}, v{r}, v{MX}')
        for n, r in enumerate(vs): A(f'v_exp_f32 v{ET+n}, v{ET+n}')
        for n in range(4): E(cvx(n))
        EL(cvm)
        EL(pvx); EL(pvm)
        A('s_nop 7')
        A(f's_branch L_ch_pvdone{wv}')
    A(f's_branch L_ch_step0')
    for wv in range(4): loop(wv)
    A.label('L_ch_last')
    E(kmst(sKMp))
    A('s_branch L_ch_done')
    A.label('L_ch_fail')
    A(f's_mov_b32 s{sFail}, 1')
    A.label('L_ch_done')
    if timing:
        A('s_waitcnt vmcnt(0) lgkmcnt(0)')
        if LIGHT:
            A(f's_memtime s[{sSt+2}:{sSt+3}]'); A('s_waitcnt lgkmcnt(0)'); A(f's_sub_u32 s{sAcc}, s{sSt+2}, s{sSt}')
        A(f's_memrealtime s[{sSt}:{sSt+1}]'); A('s_waitcnt lgkmcnt(0)')
        A(f's_sub_u32 s{sT0}, s{sSt}, s{sRt}')
        A(f's_sub_u32 s{sT1}, s{sRt}, s{sRt0}')
        srcs = [sAcc + i for i in range(NST)] + [sPg, sPr, sFail, sT0, sT1, sLast]
        for i, sr in enumerate(srcs): A(f'v_mov_b32 v{16+i}, s{sr}')
        A(f"""
s_lshl_b32 s{sT0}, s{sH}, 8
s_lshl_b32 s{sT1}, s{sWave}, 6
s_add_u32 s{sT0}, s{sT0}, s{sT1}
s_add_u32 s{sT0}, s{sT0}, {OFF_TIM}
v_mov_b32 v12, 0
s_mov_b64 exec, 1
""")
        for i in range(4):
            A(f'buffer_store_dwordx4 v[{16+4*i}:{19+4*i}], v12, {W}, s{sT0} offen offset:{16*i}')
    A('s_waitcnt vmcnt(0) lgkmcnt(0)')

def gen_standalone(timing=False, nsteps=64):
    A = Asm()
    A.raw('; @launch grid=(256,1,1) block=(256,1,1) lds=163840')
    A.raw('.amdgcn_target "amdgcn-amd-amdhsa--gfx950"\n.text\n.globl chain_kernel\n.p2align 8\n.type chain_kernel,@function\nchain_kernel:')
    A(f'''
s_cmp_ge_u32 s2, 256
s_cbranch_scc1 L_end
s_load_dwordx2 s[{sWS}:{sWS+1}], s[0:1], 120
s_load_dwordx2 s[{sDBG}:{sDBG+1}], s[0:1], 112
s_load_dwordx2 s[{sWQ}:{sWQ+1}], s[0:1], 16
s_load_dwordx2 s[{sWK}:{sWK+1}], s[0:1], 24
s_load_dwordx2 s[{sWV}:{sWV+1}], s[0:1], 32
s_load_dwordx2 s[{sWO}:{sWO+1}], s[0:1], 40
s_load_dwordx2 s[{sM0}:{sM0+1}], s[0:1], 8
s_memrealtime s[{sRt0}:{sRt0+1}]
s_getreg_b32 s3, hwreg(HW_REG_XCC_ID)
s_and_b32 s3, s3, 15
s_cmp_lg_u32 s3, 0
s_cbranch_scc1 L_end
v_lshrrev_b32 v1, 6, v0
s_mov_b32 s{sWS+2}, {WS_BYTES}
s_mov_b32 s{sWS+3}, 0x20000
s_mov_b32 s{sDBG+2}, 256
s_mov_b32 s{sDBG+3}, 0x20000
v_readfirstlane_b32 s{sWave}, v1
''')
    for s in (sWQ, sWK, sWV, sWO):
        A(f's_mov_b32 s{s+2}, 0x400000'); A(f's_mov_b32 s{s+3}, 0x20000')
    A(f's_mov_b32 s{sM0+2}, 8192'); A(f's_mov_b32 s{sM0+3}, 0x20000')
    A(f'''
s_waitcnt lgkmcnt(0)
s_cmp_lg_u32 s{sWave}, 0
s_cbranch_scc1 L_norank
v_mov_b32 v2, {DBG_RANK0*4}
v_mov_b32 v3, 1
s_mov_b64 exec, 1
buffer_atomic_add v3, v2, s[{sDBG}:{sDBG+3}], 0 offen sc0
s_waitcnt vmcnt(0)
s_mov_b64 exec, -1
v_readfirstlane_b32 s{sH}, v3
v_lshlrev_b32 v2, 13, v0
v_mov_b32 v3, s{sH}
s_mov_b64 exec, 15
ds_write_b32 v2, v3
s_mov_b64 exec, -1
s_waitcnt lgkmcnt(0)
L_norank:
s_barrier
v_lshlrev_b32 v2, 13, v1
ds_read_b32 v3, v2
s_waitcnt lgkmcnt(0)
v_readfirstlane_b32 s{sH}, v3
s_nop 3
s_cmp_ge_u32 s{sH}, {NCU}
s_cbranch_scc1 L_end
''')
    A.dsq = []; A.vmq = []
    gen_chain(A, timing=timing, nsteps=nsteps)
    A.label('L_end')
    A('s_endpgm')
    A.raw('''.section .rodata,"a"
.p2align 6
.amdhsa_kernel chain_kernel
  .amdhsa_next_free_vgpr 512
  .amdhsa_next_free_sgpr 102
  .amdhsa_accum_offset 256
  .amdhsa_group_segment_fixed_size 0
  .amdhsa_kernarg_size 128
  .amdhsa_user_sgpr_count 2
  .amdhsa_user_sgpr_kernarg_segment_ptr 1
  .amdhsa_system_sgpr_workgroup_id_x 1
  .amdhsa_float_denorm_mode_32 3
.end_amdhsa_kernel''')
    return A.text()
```

```python
from asmlib import Asm
import chain as C

OFF_H = 0x4000000
NTILES = 440
sWS, sDBG = C.sWS, C.sDBG
sWave = C.sWave
sX = 20
sWt = 24
sB1 = 28
sPq, sPk, sPv, sPw1 = 32, 34, 36, 38
sTile, sTb, sCt, sTyp, sStride, sOut, sK = 40, 41, 42, 43, 44, 45, 46
sT0, sT1, sXo, sWo_, sM0x, sM0w, sNW, sStr2 = 47, 48, 49, 50, 51, 52, 53, 54
sFlag = 55
vLane, vXs, vWs0, vWs1 = 1, 2, 3, 4
vXa = [5, 6, 7, 8]
vWa = [9, 10, 11, 12]
vSt, vT0, vT1, vT2 = 13, 14, 15, 16
FX = [32, 64]
FW = [48, 80]
EP = 96
BI = 128
STG = 65536

def gen_setup(A):
    A(f'''
v_and_b32 v{vLane}, 63, v0
; x DMA source: row = l/8 ; chunk = (l%8) ^ ((row/2)%8 with row including 8*instr index -> handled below)
v_lshrrev_b32 v{vT0}, 3, v{vLane}
v_and_b32 v{vT1}, 7, v{vLane}
v_lshrrev_b32 v{vT2}, 1, v{vT0}
v_xor_b32 v{vT1}, v{vT1}, v{vT2}
v_lshlrev_b32 v{vXs}, 10, v{vT0}
v_lshl_add_u32 v{vXs}, v{vT1}, 4, v{vXs}
v_and_b32 v{vT0}, 31, v{vLane}               ; row
v_lshrrev_b32 v{vT1}, 5, v{vLane}            ; hh
v_bfe_u32 v{vT2}, v{vLane}, 1, 3             ; swz
s_lshr_b32 s{sT0}, s{sWave}, 1
s_lshl_b32 s{sT0}, s{sT0}, 14
''')
    for kk in range(4):
        A(f'''
v_add_u32 v{vXa[kk]}, {2*kk}, v{vT1}
v_xor_b32 v{vXa[kk]}, v{vXa[kk]}, v{vT2}
v_lshlrev_b32 v{vXa[kk]}, 4, v{vXa[kk]}
v_lshl_add_u32 v{vXa[kk]}, v{vT0}, 7, v{vXa[kk]}
v_add_u32 v{vXa[kk]}, s{sT0}, v{vXa[kk]}
''')
    A(f'''
v_bfe_u32 v{vT0}, v{vLane}, 2, 2             ; r'
v_lshl_add_u32 v{vT2}, v{vT1}, 3, v{vT0}     ; 8hh + r'
v_lshlrev_b32 v{vT2}, 9, v{vT2}
v_bfe_u32 v{vSt}, v{vLane}, 4, 1
v_lshl_add_u32 v{vT2}, v{vSt}, 5, v{vT2}
v_and_b32 v{vSt}, 3, v{vLane}
v_lshl_add_u32 v{vT2}, v{vSt}, 3, v{vT2}
s_and_b32 s{sT0}, s{sWave}, 1
s_lshl_b32 s{sT0}, s{sT0}, 8
s_add_u32 s{sT0}, s{sT0}, 32768
v_add_u32 v{vT2}, s{sT0}, v{vT2}
''')
    for nt in range(4):
        A(f'v_xor_b32 v{vWa[nt]}, {nt}, v{vT0}')
        A(f'v_lshl_add_u32 v{vWa[nt]}, v{vWa[nt]}, 6, v{vT2}')
    A(f'''
s_lshl_b32 s{sM0x}, s{sWave}, 13
s_add_u32 s{sM0w}, s{sM0x}, 32768
''')

def gen_tiles(A, st_flags='', signal=None, lbl='sa', hook=None):
    W = f's[{sWS}:{sWS+3}]'
    A.label(f'L_{lbl}_tile')
    A(f'''
s_cmp_ge_u32 s{sTile}, 256
s_cbranch_scc1 L_{lbl}_d2
s_cmp_ge_u32 s{sTile}, 96
s_cbranch_scc1 L_{lbl}_d1
s_mul_i32 s{sCt}, s{sTile}, 21846
s_lshr_b32 s{sCt}, s{sCt}, 16
s_mul_i32 s{sT0}, s{sCt}, 3
s_sub_u32 s{sTb}, s{sTile}, s{sT0}
s_add_u32 s{sTb}, s{sTb}, 1
s_branch L_{lbl}_dkv
L_{lbl}_d1:
s_sub_u32 s{sCt}, s{sTile}, 96
s_and_b32 s{sTb}, s{sCt}, 3
s_add_u32 s{sTb}, s{sTb}, 4
s_lshr_b32 s{sCt}, s{sCt}, 2
L_{lbl}_dkv:
s_mov_b32 s{sStride}, 8192
s_mov_b32 s{sWt+2}, 0x400000
s_cmp_ge_u32 s{sCt}, 16
s_cbranch_scc1 L_{lbl}_dv
s_mov_b32 s{sTyp}, 0
s_mov_b32 s{sWt}, s{sPk}
s_mov_b32 s{sWt+1}, s{sPk+1}
s_mov_b32 s{sOut}, {C.OFF_KX}
s_branch L_{lbl}_dq2
L_{lbl}_dv:
s_sub_u32 s{sCt}, s{sCt}, 16
s_mov_b32 s{sTyp}, 1
s_mov_b32 s{sWt}, s{sPv}
s_mov_b32 s{sWt+1}, s{sPv+1}
s_mov_b32 s{sOut}, {C.OFF_VX}
s_branch L_{lbl}_dq2
L_{lbl}_d2:
s_and_b32 s{sTb}, s{sTile}, 7
s_cmp_ge_u32 s{sTile}, 384
s_cbranch_scc1 L_{lbl}_dh
s_sub_u32 s{sCt}, s{sTile}, 256
s_lshr_b32 s{sCt}, s{sCt}, 3
s_mov_b32 s{sStride}, 8192
s_mov_b32 s{sWt+2}, 0x400000
s_mov_b32 s{sTyp}, 0
s_mov_b32 s{sWt}, s{sPq}
s_mov_b32 s{sWt+1}, s{sPq+1}
s_mov_b32 s{sOut}, {C.OFF_QX}
L_{lbl}_dq2:
s_lshl_b32 s{sT0}, s{sTb}, 3
s_lshr_b32 s{sT1}, s{sWave}, 1
s_lshl_b32 s{sT1}, s{sT1}, 2
s_add_u32 s{sT0}, s{sT0}, s{sT1}
s_lshl_b32 s{sT0}, s{sT0}, 5
s_lshl_b32 s{sT1}, s{sCt}, 1
s_add_u32 s{sT0}, s{sT0}, s{sT1}
s_and_b32 s{sT1}, s{sWave}, 1
s_add_u32 s{sT0}, s{sT0}, s{sT1}
s_lshl_b32 s{sT0}, s{sT0}, 13
s_add_u32 s{sOut}, s{sOut}, s{sT0}
s_branch L_{lbl}_dd
L_{lbl}_dh:
s_sub_u32 s{sCt}, s{sTile}, 384
s_lshr_b32 s{sCt}, s{sCt}, 3
s_mov_b32 s{sStride}, 3584
s_mov_b32 s{sWt+2}, {512*3584}
s_mov_b32 s{sTyp}, 2
s_mov_b32 s{sWt}, s{sPw1}
s_mov_b32 s{sWt+1}, s{sPw1+1}
s_lshl_b32 s{sT0}, s{sTb}, 3
s_lshr_b32 s{sT1}, s{sWave}, 1
s_lshl_b32 s{sT1}, s{sT1}, 2
s_add_u32 s{sT0}, s{sT0}, s{sT1}
s_mul_i32 s{sT0}, s{sT0}, 56
s_lshl_b32 s{sT1}, s{sCt}, 3
s_add_u32 s{sT0}, s{sT0}, s{sT1}
s_and_b32 s{sT1}, s{sWave}, 1
s_lshl_b32 s{sT1}, s{sT1}, 2
s_add_u32 s{sT0}, s{sT0}, s{sT1}
s_lshl_b32 s{sT0}, s{sT0}, 11
s_add_u32 s{sOut}, s{sT0}, {OFF_H}
L_{lbl}_dd:
s_mov_b32 s{sWt+3}, 0x20000
s_lshl_b32 s{sXo}, s{sTb}, 18
s_lshl_b32 s{sT0}, s{sWave}, 16
s_add_u32 s{sXo}, s{sXo}, s{sT0}
s_lshl_b32 s{sT0}, s{sWave}, 4
s_mul_i32 s{sWo_}, s{sT0}, s{sStride}
s_lshl_b32 s{sT0}, s{sCt}, 9
s_add_u32 s{sWo_}, s{sWo_}, s{sT0}
s_lshl_b32 s{sStr2}, s{sStride}, 1
; W DMA lane offsets: row=l/32 ; c=l%32 ; src block = (c/4) ^ (2*(j%2)+row)
v_lshrrev_b32 v{vT0}, 5, v{vLane}
v_and_b32 v{vT1}, 31, v{vLane}
v_lshlrev_b32 v{vT2}, 2, v{vT0}
v_xor_b32 v{vT1}, v{vT1}, v{vT2}
v_lshlrev_b32 v{vT1}, 4, v{vT1}
v_mul_lo_u32 v{vT0}, v{vT0}, s{sStride}
v_add_u32 v{vWs0}, v{vT0}, v{vT1}
v_xor_b32 v{vT1}, 128, v{vT1}
v_add_u32 v{vWs1}, v{vT0}, v{vT1}
v_xor_b32 v{vT2}, 64, v{vXs}
''')
    vXs1 = vT2
    def dma_list(buf):
        L = []
        for j in range(8):
            L.append([f's_add_u32 m0, s{sM0x}, {buf*STG + j*1024}', f's_add_u32 s{sT0}, s{sXo}, {j*8192}',
                      (f'buffer_load_dwordx4 v{vXs if j % 2 == 0 else vXs1}, s[{sX}:{sX+3}], s{sT0} offen lds', 'dma')])
        for j in range(8):
            L.append([f's_add_u32 m0, s{sM0w}, {buf*STG + j*1024}', f's_mov_b32 s{sT1}, s{sWo_}' if j == 0 else f's_add_u32 s{sT1}, s{sT1}, s{sStr2}',
                      (f'buffer_load_dwordx4 v{vWs0 if j % 2 == 0 else vWs1}, s[{sWt}:{sWt+3}], s{sT1} offen lds', 'dma')])
        L[-1] += [f's_add_u32 s{sXo}, s{sXo}, 128', f's_lshl_b32 s{sT0}, s{sStride}, 6', f's_add_u32 s{sWo_}, s{sWo_}, s{sT0}']
        return L
    def E(x):
        if isinstance(x, tuple): A(x[0], x[1])
        else: A(x)
    for grp in dma_list(0):
        for x in grp: E(x)
    def frag_reads(buf, kk, fb):
        L = []
        for mt in range(4):
            L.append((f'ds_read_b128 v[{FX[fb]+4*mt}:{FX[fb]+4*mt+3}], v{vXa[kk]} offset:{mt*4096}', ('f', fb)))
        for nt in range(4):
            for q in range(2):
                L.append((f'ds_read_b64_tr_b16 v[{FW[fb]+4*nt+2*q}:{FW[fb]+4*nt+2*q+1}], v{vWa[nt]} offset:{(16*kk+4*q)*512}', ('f', fb)))
        return L
    def main(typ_v, tag):
        A(f's_mov_b32 s{sK}, 0')
        A.label(f'L_{lbl}_k{tag}')
        A.dsq = []; A.vmq = []
        for buf in range(2):
            A('s_waitcnt vmcnt(0)')
            A('s_barrier')
            for x in frag_reads(buf, 0, 0): E(x)
            dl = dma_list(1 - buf)
            if buf == 1:
                pass
            for kk in range(4):
                fb = kk % 2
                nxt = frag_reads(buf, kk + 1, 1 - fb) if kk < 3 else []
                A.wait_ds(('f', fb))
                n = 0
                for mt in range(4):
                    for nt in range(4):
                        d = (mt * 4 + nt) * 16
                        xa = f'v[{FX[fb]+4*mt}:{FX[fb]+4*mt+3}]'; wa = f'v[{FW[fb]+4*nt}:{FW[fb]+4*nt+3}]'
                        a, b = (xa, wa) if typ_v else (wa, xa)
                        A(f'v_mfma_f32_32x32x16_bf16 a[{d}:{d+15}], {a}, {b}, a[{d}:{d+15}]')
                        if n < len(nxt): E(nxt[n])
                        if kk < 2 and n % 2 == 1:
                            grp = dl[kk * 8 + n // 2]
                            if buf == 1:
                                A(f's_cmp_eq_u32 s{sK}, 3'); A(f's_cbranch_scc1 L_{lbl}_sk{tag}_{kk}_{n}')
                            for x in grp: E(x)
                            if buf == 1: A.label(f'L_{lbl}_sk{tag}_{kk}_{n}')
                        n += 1
            for r in vXa + vWa: A(f'v_xor_b32 v{r}, {STG}, v{r}')
        A(f's_add_u32 s{sK}, s{sK}, 1')
        A(f's_cmp_lt_u32 s{sK}, 4')
        A(f's_cbranch_scc1 L_{lbl}_k{tag}')
    for r in range(256): A(f'v_accvgpr_write_b32 a{r}, 0')
    if hook: A('s_waitcnt vmcnt(0)'); hook(4)
    A(f's_cmp_eq_u32 s{sTyp}, 1')
    A(f's_cbranch_scc1 L_{lbl}_mv')
    main(False, 't')
    A(f's_branch L_{lbl}_ep')
    A.label(f'L_{lbl}_mv')
    main(True, 'v')
    A.label(f'L_{lbl}_ep')
    if hook: hook(5)
    A('s_nop 15')
    A(f's_cmp_eq_u32 s{sTyp}, 2')
    A(f's_cbranch_scc1 L_{lbl}_eh')
    A(f'''
v_bfe_u32 v{vT0}, v{vLane}, 4, 1
v_lshlrev_b32 v{vSt}, 10, v{vT0}
v_lshrrev_b32 v{vT0}, 5, v{vLane}
v_lshl_add_u32 v{vSt}, v{vT0}, 8, v{vSt}
v_and_b32 v{vT0}, 15, v{vLane}
v_lshl_add_u32 v{vSt}, v{vT0}, 4, v{vSt}
''')
    n = 0
    for mt in range(4):
        for nt in range(4):
            d = (mt * 4 + nt) * 16
            if nt % 2 == 0: A(f's_add_u32 s{sT0}, s{sOut}, {mt*32*8192 + nt*2048}')
            for ap in range(2):
                t = EP + (n % 2) * 12; n += 1
                regs = [d + 4*ap + b for b in range(4)] + [d + 4*ap + 8 + b for b in range(4)]
                for i, r in enumerate(regs): A(f'v_accvgpr_read_b32 v{t+4+i}, a{r}')
                for i in range(4): A(f'v_cvt_pk_bf16_f32 v{t+i}, v{t+4+2*i}, v{t+5+2*i}')
                A(f'buffer_store_dwordx4 v[{t}:{t+3}], v{vSt}, {W}, s{sT0} offen offset:{(nt%2)*2048 + ap*512} {st_flags}', 'st')
    A(f's_branch L_{lbl}_done')
    A.label(f'L_{lbl}_eh')
    A(f'''
v_lshrrev_b32 v{vT0}, 5, v{vLane}
v_lshlrev_b32 v{vT0}, 3, v{vT0}
s_lshl_b32 s{sT0}, s{sCt}, 9
s_and_b32 s{sT1}, s{sWave}, 1
s_lshl_b32 s{sT1}, s{sT1}, 8
s_add_u32 s{sT0}, s{sT0}, s{sT1}
v_lshlrev_b32 v{vSt}, 4, v{vLane}
''')
    for nt in range(4):
        for a in range(4):
            r = 192 + (nt * 4 + a) * 2
            A(f'buffer_load_dwordx2 v[{r}:{r+1}], v{vT0}, s[{sB1}:{sB1+3}], s{sT0} offen offset:{nt*64 + a*16}', 'b')
    A('s_waitcnt vmcnt(0)'); A.vmq = []
    for i in range(32):
        A(f'v_lshlrev_b32 v{BI+2*i}, 16, v{192+i}')
        A(f'v_and_b32 v{BI+2*i+1}, 0xffff0000, v{192+i}')
    n = 0
    for mt in range(4):
        for nt in range(4):
            d = (mt * 4 + nt) * 16
            if nt % 2 == 0: A(f's_add_u32 s{sT0}, s{sOut}, {mt*56*2048 + nt*2048}')
            for ap in range(2):
                t = EP + (n % 2) * 12; n += 1
                idx = [4*ap + b for b in range(4)] + [4*ap + 8 + b for b in range(4)]
                for i, r in enumerate(idx): A(f'v_accvgpr_read_b32 v{t+4+i}, a{d+r}')
                for i in range(4): A(f'v_cvt_pk_bf16_f32 v{t+i}, v{t+4+2*i}, v{t+5+2*i}')
                for i in range(4):
                    A(f'v_lshlrev_b32 v{t+4+2*i}, 16, v{t+i}')
                    A(f'v_and_b32 v{t+5+2*i}, 0xffff0000, v{t+i}')
                for i, r in enumerate(idx): A(f'v_add_f32 v{t+4+i}, v{t+4+i}, v{BI + nt*16 + r}')
                for i in range(4): A(f'v_cvt_pk_bf16_f32 v{t+i}, v{t+4+2*i}, v{t+5+2*i}')
                for i in range(4):
                    A(f'v_lshlrev_b32 v{t+4+2*i}, 16, v{t+i}')
                    A(f'v_and_b32 v{t+5+2*i}, 0xffff0000, v{t+i}')
                for i in range(8): A(f'v_max_f32 v{t+4+i}, 0, v{t+4+i}')
                for i in range(8): A(f'v_mul_f32 v{t+4+i}, v{t+4+i}, v{t+4+i}')
                for i in range(4): A(f'v_cvt_pk_bf16_f32 v{t+i}, v{t+4+2*i}, v{t+5+2*i}')
                A(f'buffer_store_dwordx4 v[{t}:{t+3}], v{vSt}, {W}, s{sT0} offen offset:{(nt%2)*2048 + ap*1024} {st_flags}', 'st')
    A.label(f'L_{lbl}_done')
    if hook: hook(6)
    if signal: signal(A)
    else: A('s_barrier')
    A(f's_add_u32 s{sTile}, s{sTile}, s{sNW}')
    A(f's_cmp_lt_u32 s{sTile}, {NTILES}')
    A(f's_cbranch_scc1 L_{lbl}_tile')

def gen_mini(A, st_flags, lbl='mi'):
    W = f's[{sWS}:{sWS+3}]'
    MS = 40960
    vXm = [17, 18, 19, 20]; vWm = [21, 22, 23, 24]; vXr = [25, 26, 27, 28]; vWr = [112, 113, 114, 115]
    A(f"""
s_lshr_b32 s{sCt}, s{sTile}, 2
s_and_b32 s{sTb}, s{sTile}, 3
s_mov_b32 s{sWt+2}, 0x400000
s_mov_b32 s{sWt+3}, 0x20000
s_cmp_ge_u32 s{sCt}, 16
s_cselect_b32 s{sWt}, s{sPv}, s{sPk}
s_cselect_b32 s{sWt+1}, s{sPv+1}, s{sPk+1}
s_mov_b32 s{sOut}, {C.OFF_KX >> 13}
s_cselect_b32 s{sOut}, {C.OFF_VX >> 13}, s{sOut}
s_cselect_b32 s{sTyp}, 1, 0
s_and_b32 s{sCt}, s{sCt}, 15
s_lshl_b32 s{sT0}, s{sTb}, 1
s_lshr_b32 s{sT1}, s{sWave}, 1
s_add_u32 s{sT0}, s{sT0}, s{sT1}
s_lshl_b32 s{sT0}, s{sT0}, 5
s_add_u32 s{sOut}, s{sOut}, s{sT0}
s_lshl_b32 s{sT0}, s{sCt}, 1
s_add_u32 s{sOut}, s{sOut}, s{sT0}
s_and_b32 s{sT0}, s{sWave}, 1
s_add_u32 s{sOut}, s{sOut}, s{sT0}
s_lshl_b32 s{sOut}, s{sOut}, 13
s_lshl_b32 s{sXo}, s{sTb}, 16
s_lshl_b32 s{sT0}, s{sWave}, 14
s_add_u32 s{sXo}, s{sXo}, s{sT0}
s_lshl_b32 s{sWo_}, s{sWave}, 17
s_lshl_b32 s{sT0}, s{sCt}, 9
s_add_u32 s{sWo_}, s{sWo_}, s{sT0}
v_lshrrev_b32 v{vT0}, 5, v{vLane}
v_and_b32 v{vT1}, 31, v{vLane}
v_lshlrev_b32 v{vT2}, 2, v{vT0}
v_xor_b32 v{vT1}, v{vT1}, v{vT2}
v_lshlrev_b32 v{vT1}, 4, v{vT1}
v_lshl_add_u32 v{vWs0}, v{vT0}, 13, v{vT1}
v_xor_b32 v{vWs1}, 128, v{vWs0}
v_xor_b32 v{vT2}, 64, v{vXs}
s_lshl_b32 s{sK}, s{sWave}, 11
s_lshl_b32 s{sStr2}, s{sWave}, 13
s_add_u32 s{sStr2}, s{sStr2}, 8192
""")
    def issue(st):
        for j in range(2):
            A(f's_add_u32 m0, s{sK}, {(st % 4)*MS + j*1024}'); A(f's_add_u32 s{sT0}, s{sXo}, {j*8192 + st*128}')
            A(f'buffer_load_dwordx4 v{vXs if j == 0 else vT2}, s[{sX}:{sX+3}], s{sT0} offen lds', ('s', st))
        for j in range(8):
            A(f's_add_u32 m0, s{sStr2}, {(st % 4)*MS + j*1024}'); A(f's_add_u32 s{sT0}, s{sWo_}, {(st*64 + 2*j)*8192}')
            A(f'buffer_load_dwordx4 v{vWs0 if j % 2 == 0 else vWs1}, s[{sWt}:{sWt+3}], s{sT0} offen lds', ('s', st))
    A.vmq = []; A.dsq = []
    for st in range(4): issue(st)
    A(f's_lshr_b32 s{sT0}, s{sWave}, 1'); A(f's_mul_i32 s{sT0}, s{sT0}, {16384 - 4096}')
    for i in range(4):
        A(f'v_subrev_u32 v{vXm[i]}, s{sT0}, v{vXa[i]}'); A(f'v_subrev_u32 v{vWm[i]}, {32768 - 8192}, v{vWa[i]}')
    q0 = list(A.vmq)
    def body(typ_v):
        A.vmq = list(q0); A.dsq = []
        for st in range(8):
            for i in range(4):
                A(f'v_add_u32 v{vXr[i]}, {(st % 4)*MS}, v{vXm[i]}'); A(f'v_add_u32 v{vWr[i]}, {(st % 4)*MS}, v{vWm[i]}')
            A.wait_vm(('s', st))
            A('s_barrier')
            if 1 <= st and st + 3 < 8: issue(st + 3)
            for kk in range(4):
                fx = 32 + kk * 20
                A(f'ds_read_b128 v[{fx}:{fx+3}], v{vXr[kk]}', ('f', kk))
                for nt in range(4):
                    for q in range(2):
                        A(f'ds_read_b64_tr_b16 v[{fx+4+4*nt+2*q}:{fx+5+4*nt+2*q}], v{vWr[nt]} offset:{(16*kk+4*q)*512}', ('f', kk))
                if kk >= 1: mm(typ_v, st, kk - 1)
            mm(typ_v, st, 3)
    def mm(typ_v, st, kk):
        fx = 32 + kk * 20
        A.wait_ds(('f', kk))
        for nt in range(4):
            d = 128 + nt * 16
            xa = f'v[{fx}:{fx+3}]'; wa = f'v[{fx+4+4*nt}:{fx+7+4*nt}]'
            a, b = (xa, wa) if typ_v else (wa, xa)
            c = '0' if (st == 0 and kk == 0) else f'v[{d}:{d+15}]'
            A(f'v_mfma_f32_32x32x16_bf16 v[{d}:{d+15}], {a}, {b}, {c}')
    A(f's_cmp_eq_u32 s{sTyp}, 1'); A(f's_cbranch_scc1 L_{lbl}_v')
    body(False)
    A(f's_branch L_{lbl}_ep')
    A.label(f'L_{lbl}_v')
    body(True)
    A.label(f'L_{lbl}_ep')
    A(f"""
v_bfe_u32 v{vT0}, v{vLane}, 4, 1
v_lshlrev_b32 v{vSt}, 10, v{vT0}
v_lshrrev_b32 v{vT0}, 5, v{vLane}
v_lshl_add_u32 v{vSt}, v{vT0}, 8, v{vSt}
v_and_b32 v{vT0}, 15, v{vLane}
v_lshl_add_u32 v{vSt}, v{vT0}, 4, v{vSt}
s_add_u32 s{sT0}, s{sOut}, 4096
s_nop 7
""")
    for nt in range(4):
        d = 128 + nt * 16
        for ap in range(2):
            t = 32 + (nt * 2 + ap) * 4
            regs = [d + 4*ap + b for b in range(4)] + [d + 4*ap + 8 + b for b in range(4)]
            for i in range(4): A(f'v_cvt_pk_bf16_f32 v{t+i}, v{regs[2*i]}, v{regs[2*i+1]}')
            A(f'buffer_store_dwordx4 v[{t}:{t+3}], v{vSt}, {W}, s{sOut if nt < 2 else sT0} offen offset:{(nt%2)*2048 + ap*512} {st_flags}', 'st')

def load_args(A):
    A(f'''
s_load_dwordx2 s[{sX}:{sX+1}], s[0:1], 0
s_load_dwordx2 s[{sPq}:{sPq+1}], s[0:1], 16
s_load_dwordx2 s[{sPk}:{sPk+1}], s[0:1], 24
s_load_dwordx2 s[{sPv}:{sPv+1}], s[0:1], 32
s_load_dwordx2 s[{sPw1}:{sPw1+1}], s[0:1], 64
s_load_dwordx2 s[{sB1}:{sB1+1}], s[0:1], 72
s_mov_b32 s{sX+2}, 0x200000
s_mov_b32 s{sX+3}, 0x20000
s_mov_b32 s{sB1+2}, 3584
s_mov_b32 s{sB1+3}, 0x20000
''')

KD = '''.amdhsa_kernel {name}
  .amdhsa_next_free_vgpr 512
  .amdhsa_next_free_sgpr 102
  .amdhsa_accum_offset 256
  .amdhsa_group_segment_fixed_size 0
  .amdhsa_kernarg_size 128
  .amdhsa_user_sgpr_count 2
  .amdhsa_user_sgpr_kernarg_segment_ptr 1
  .amdhsa_system_sgpr_workgroup_id_x 1
  .amdhsa_float_denorm_mode_32 3
.end_amdhsa_kernel'''

def gen_kernel(A, name='stagea_kernel'):
    A.raw(f'.globl {name}\n.p2align 8\n.type {name},@function\n{name}:')
    A(f'''
s_cmp_ge_u32 s2, 256
s_cbranch_scc1 L_sa_end
s_load_dwordx2 s[{sWS}:{sWS+1}], s[0:1], 120
v_lshrrev_b32 v1, 6, v0
s_mov_b32 s{sWS+2}, {C.WS_BYTES}
s_mov_b32 s{sWS+3}, 0x20000
v_readfirstlane_b32 s{sWave}, v1
''')
    load_args(A)
    A(f'''
s_and_b32 s{sT0}, s2, 7
s_lshl_b32 s{sT0}, s{sT0}, 5
s_lshr_b32 s{sTile}, s2, 3
s_add_u32 s{sTile}, s{sTile}, s{sT0}
s_mov_b32 s{sNW}, 256
s_waitcnt lgkmcnt(0)
''')
    gen_setup(A)
    gen_tiles(A)
    A('s_waitcnt vmcnt(0)')
    A.label('L_sa_end')
    A('s_endpgm')

def gen_standalone():
    A = Asm()
    A.raw('; @launch grid=(256,1,1) block=(256,1,1) lds=163840')
    A.raw('.amdgcn_target "amdgcn-amd-amdhsa--gfx950"\n.text')
    gen_kernel(A)
    A.raw('.section .rodata,"a"\n.p2align 6\n' + KD.format(name='stagea_kernel'))
    return A.text()
```

```python
import math
from asmlib import Asm
import chain as C, stagea as S
from chain import fbits

OFF_O = 0x5000000
OFF_FLG = 0x2C0000
SPIN_MAX = 400000
sWS, sDBG, sWave = C.sWS, C.sDBG, C.sWave
sX = S.sX
sWOr, sW2, sB2, sGW, sOUT = 56, 60, 64, 68, 72
sSeg, sNG, sCb, sGrp, sCnt, sHead = 76, 77, 78, 79, 80, 81
sT0, sT1, sT2, sSpin, sCc, sNL2e, sLw, sFail = 82, 83, 84, 85, 86, 87, 88, 89
L_W2 = 0
L_KM = 114688
L_RED = 131072
vLane, vL16, vFr, vTr, vKw, vKr, vVr, vRw, vRr, vXg, vOut, vG, vT0, vT1, vT2, vT3 = range(1, 17)
BI2 = 18
MASK = 24
ACA = 40; ACB = 56
QF = 72; KF = 104; SX = 136; SM = 152; VF = 168; RAW = 184; OT = 200; PB = 232; VM = 244
RING = 72

def load_args(A):
    A(f'''
s_load_dwordx2 s[{sWOr}:{sWOr+1}], s[0:1], 40
s_load_dwordx2 s[{sW2}:{sW2+1}], s[0:1], 80
s_load_dwordx2 s[{sB2}:{sB2+1}], s[0:1], 88
s_load_dwordx2 s[{sGW}:{sGW+1}], s[0:1], 96
s_load_dwordx2 s[{sOUT}:{sOUT+1}], s[0:1], 104
s_mov_b32 s{sWOr+2}, 0x400000
s_mov_b32 s{sWOr+3}, 0x20000
s_mov_b32 s{sW2+2}, {1792*1024}
s_mov_b32 s{sW2+3}, 0x20000
s_mov_b32 s{sB2+2}, 1024
s_mov_b32 s{sB2+3}, 0x20000
s_mov_b32 s{sGW+2}, 1024
s_mov_b32 s{sGW+3}, 0x20000
s_mov_b32 s{sOUT+2}, 0x200000
s_mov_b32 s{sOUT+3}, 0x20000
''')

def gen_tail(A, ld='sc1', wait_inputs=None, ts=lambda i: None):
    W = f's[{sWS}:{sWS+3}]'
    A(f'''
v_and_b32 v{vLane}, 63, v0
v_lshlrev_b32 v{vL16}, 4, v{vLane}
; vFr: fragment address in KX/VX/QX block: (n/16)*1024 + hh*256 + (n%16)*16   (+ a'*512 + blk*2048)
v_bfe_u32 v{vT0}, v{vLane}, 4, 1
v_lshlrev_b32 v{vFr}, 10, v{vT0}
v_lshrrev_b32 v{vT1}, 5, v{vLane}            ; hh
v_lshl_add_u32 v{vFr}, v{vT1}, 8, v{vFr}
v_and_b32 v{vT2}, 15, v{vLane}
v_lshl_add_u32 v{vFr}, v{vT2}, 4, v{vFr}
v_bfe_u32 v{vT3}, v{vLane}, 2, 2             ; r'
v_lshl_add_u32 v{vT3}, v{vT1}, 2, v{vT3}     ; 4hh + r'
v_lshlrev_b32 v{vTr}, 6, v{vT3}
v_lshl_add_u32 v{vTr}, v{vT0}, 5, v{vTr}
v_and_b32 v{vKw}, 3, v{vLane}
v_lshl_add_u32 v{vTr}, v{vKw}, 3, v{vTr}
; km staging: base = L_KM + wave*4096 ; write addr = j*16 + g*4 ; K read = (4hh+r')*16 + (c%2)*8 ; V read = 2048 + n*16 + hh*8
s_lshl_b32 s{sT0}, s{sWave}, 12
s_add_u32 s{sT0}, s{sT0}, {L_KM}
v_and_b32 v{vKr}, 1, v{vLane}
v_lshlrev_b32 v{vKr}, 3, v{vKr}
v_lshl_add_u32 v{vKr}, v{vT3}, 4, v{vKr}
v_add_u32 v{vKr}, s{sT0}, v{vKr}
v_lshrrev_b32 v{vKw}, 4, v{vLane}
v_lshlrev_b32 v{vKw}, 2, v{vKw}
v_lshl_add_u32 v{vKw}, v{vT2}, 4, v{vKw}
v_add_u32 v{vKw}, s{sT0}, v{vKw}
v_and_b32 v{vT2}, 31, v{vLane}               ; n
v_lshlrev_b32 v{vVr}, 4, v{vT2}
v_lshl_add_u32 v{vVr}, v{vT1}, 3, v{vVr}
s_and_b32 s{sT1}, s{sWave}, 1
s_lshl_b32 s{sT1}, s{sT1}, 10
s_add_u32 s{sT0}, s{sT0}, s{sT1}
s_add_u32 s{sT0}, s{sT0}, 2048
v_add_u32 v{vVr}, s{sT0}, v{vVr}
; reduce write: L_RED + wave*8192 + tok*128 + ((2a+hh) ^ (tok%8))*16 -> keep base without a; xor applied per a
v_and_b32 v{vT3}, 7, v{vLane}
v_xor_b32 v{vT3}, v{vT3}, v{vT1}
v_lshlrev_b32 v{vRw}, 4, v{vT3}
v_lshl_add_u32 v{vRw}, v{vT2}, 7, v{vRw}
s_lshl_b32 s{sT0}, s{sWave}, 13
s_add_u32 s{sT0}, s{sT0}, {L_RED}
v_add_u32 v{vRw}, s{sT0}, v{vRw}
; combine mapping: tok = tid/8, q = tid%8 ; read addr = L_RED + tok*128 + (q ^ (tok%8))*16
v_lshrrev_b32 v{vT0}, 3, v0
v_and_b32 v{vT3}, 7, v0
v_and_b32 v{vRr}, 7, v{vT0}
v_xor_b32 v{vRr}, v{vRr}, v{vT3}
v_lshlrev_b32 v{vRr}, 4, v{vRr}
v_lshl_add_u32 v{vRr}, v{vT0}, 7, v{vRr}
v_add_u32 v{vRr}, {L_RED}, v{vRr}
v_lshlrev_b32 v{vXg}, 10, v{vT0}
v_lshl_add_u32 v{vOut}, v{vT3}, 3, v{vXg}    ; tok*1024 + q*8
v_lshl_add_u32 v{vXg}, v{vT3}, 4, v{vXg}     ; tok*1024 + q*16
s_lshl_b32 s{sT0}, s{sCb}, 6
v_lshlrev_b32 v{vT3}, 3, v{vT3}
buffer_load_dwordx2 v[22:23], v{vT3}, s[{sB2}:{sB2+3}], s{sT0} offen
s_mov_b32 s{sCc}, {fbits((128 ** -0.5) * math.log2(math.e)):#x}
s_mov_b32 s{sNL2e}, {fbits(-math.log2(math.e)):#x}
s_lshr_b32 s{sHead}, s{sWave}, 1
s_lshl_b32 s{sT0}, s{sCb}, 1
s_add_u32 s{sHead}, s{sHead}, s{sT0}
s_mov_b32 s{sFail}, 0
v_lshlrev_b32 v{vT1}, 2, v{vT1}              ; 4hh
v_mov_b32 v{vT0}, {fbits(-1e30):#x}
''')
    for r in range(16):
        A(f'v_add_u32 v{vT3}, {8*(r//4) + r%4}, v{vT1}')
        A(f'v_cmp_gt_u32 vcc, v{vT3}, v{vT2}')
        A(f'v_cndmask_b32 v{MASK+r}, 0, v{vT0}, vcc')
    A('s_waitcnt vmcnt(0)')
    for i in range(2):
        A(f'v_lshlrev_b32 v{BI2+2*i}, 16, v{22+i}'); A(f'v_and_b32 v{BI2+2*i+1}, 0xffff0000, v{22+i}')
    ts(11)
    A(f'''
s_barrier
v_lshrrev_b32 v{vT0}, 2, v{vLane}
v_lshlrev_b32 v{vT0}, 10, v{vT0}
v_and_b32 v{vT1}, 3, v{vLane}
v_lshl_add_u32 v{vT0}, v{vT1}, 4, v{vT0}
s_lshl_b32 s{sT0}, s{sCb}, 6
v_add_u32 v{vT0}, s{sT0}, v{vT0}
s_mul_i32 s{sLw}, s{sWave}, 40960
s_lshl_b32 s{sT2}, s{sWave}, 20
v_add_u32 v{vT1}, s{sLw}, v{vTr}
''')
    A.vmq = []; A.dsq = []
    def issue(i):
        for j in range(8):
            A(f's_add_u32 m0, s{sLw}, {(i % 5)*8192 + j*1024}')
            A(f's_add_u32 s{sT0}, s{sT2}, {(i*128 + j*16)*1024}')
            A(f'buffer_load_dwordx4 v{vT0}, s[{sWOr}:{sWOr+3}], s{sT0} offen lds', ('c', i))
    for i in range(5): issue(i)
    for i in range(8):
        A.wait_vm(('c', i))
        for fb in range(4):
            for ap in range(2):
                for q in range(2):
                    r = ((i*4 + fb)*2 + ap)*4 + 2*q
                    A(f'ds_read_b64_tr_b16 a[{r}:{r+1}], v{vT1} offset:{(i%5)*8192 + fb*2048 + (16*q + 8*ap)*64}', 't')
        A.wait_all(vm=False)
        if i + 5 < 8: issue(i + 5)
    A('s_barrier')
    A(f's_mul_i32 s{sLw}, s{sWave}, 28672')
    A(f's_mul_i32 s{sT2}, s{sWave}, {448*1024}')
    for j in range(28):
        A(f's_add_u32 m0, s{sLw}, {L_W2 + j*1024}')
        A(f's_add_u32 s{sT0}, s{sT2}, {j*16*1024}')
        A(f'buffer_load_dwordx4 v{vT0}, s[{sW2}:{sW2+3}], s{sT0} offen lds', 'w2')
    A(f'v_add_u32 v{vTr}, s{sLw}, v{vTr}')
    A(f's_mov_b32 s{sSeg}, s{sGrp}')
    A(f's_mov_b32 s{sCnt}, 0')
    A.label('L_tl_seg')
    A.vmq = []; A.dsq = []
    ts(0)
    XR = 72; GR = 104
    A(f's_lshl_b32 s{sT0}, s{sSeg}, 15')
    A(f'v_and_b32 v{vT0}, 0x70, v{vXg}')
    for i in range(8):
        A(f'buffer_load_dwordx4 v[{XR+4*i}:{XR+4*i+3}], v{vXg}, s[{sX}:{sX+3}], s{sT0} offen offset:{i*128}', 'x')
        A(f'buffer_load_dwordx4 v[{GR+4*i}:{GR+4*i+3}], v{vT0}, s[{sGW}:{sGW+3}], 0 offen offset:{i*128}', 'x')
    A(f'''
s_lshl_b32 s{sT1}, s{sSeg}, 5
s_add_u32 s{sT1}, s{sT1}, s{sHead}
s_lshl_b32 s{sT1}, s{sT1}, 13
s_and_b32 s{sT2}, s{sWave}, 1
s_lshl_b32 s{sT2}, s{sT2}, 12
s_add_u32 s{sT1}, s{sT1}, s{sT2}
s_add_u32 s{sT1}, s{sT1}, {OFF_O}
v_lshlrev_b32 v{vT1}, 2, v{vL16}
buffer_load_dword v{vT2}, v{vT1}, {W}, s{sT1} offen sc1
''')
    A(f'v_mov_b32 v{vG}, 0')
    A('s_waitcnt vmcnt(0)'); A.vmq = []
    for i in range(32):
        A(f'v_lshlrev_b32 v{vT0}, 16, v{XR+i}'); A(f'v_and_b32 v{vT1}, 0xffff0000, v{XR+i}')
        A(f'v_lshlrev_b32 v{vT2}, 16, v{GR+i}'); A(f'v_and_b32 v{vT3}, 0xffff0000, v{GR+i}')
        A(f'v_mul_f32 v{vT0}, v{vT0}, v{vT2}'); A(f'v_mul_f32 v{vT1}, v{vT1}, v{vT3}')
        A(f'v_cvt_pk_bf16_f32 v{vT0}, v{vT0}, v{vT1}')
        A(f'v_lshlrev_b32 v{vT1}, 16, v{vT0}'); A(f'v_and_b32 v{vT0}, 0xffff0000, v{vT0}')
        A(f'v_add_f32 v{vG}, v{vG}, v{vT1}'); A(f'v_add_f32 v{vG}, v{vG}, v{vT0}')
    A(f'v_add_f32_dpp v{vG}, v{vG}, v{vG} quad_perm:[1,0,3,2] row_mask:0xf bank_mask:0xf')
    A(f'v_add_f32_dpp v{vG}, v{vG}, v{vG} quad_perm:[2,3,0,1] row_mask:0xf bank_mask:0xf')
    A(f'v_add_f32_dpp v{vG}, v{vG}, v{vG} row_half_mirror row_mask:0xf bank_mask:0xf')
    A(f'''
v_cvt_pk_bf16_f32 v{vG}, v{vG}, v{vG}
v_lshlrev_b32 v{vG}, 16, v{vG}
v_mul_f32 v{vG}, s{sNL2e}, v{vG}
v_exp_f32 v{vG}, v{vG}
v_add_f32 v{vG}, 1.0, v{vG}
v_rcp_f32 v{vG}, v{vG}
v_cvt_pk_bf16_f32 v{vG}, v{vG}, v{vG}
v_lshlrev_b32 v{vG}, 16, v{vG}
''')
    ts(1)
    if wait_inputs: wait_inputs(A)
    ts(2)
    A(f's_mul_i32 s{sT0}, s{sSeg}, {56*2048}')
    A(f's_add_u32 s{sT0}, s{sT0}, s{sLw}')
    A(f's_add_u32 s{sT0}, s{sT0}, {S.OFF_H}')
    for i in range(28):
        if i % 4 == 0 and i: A(f's_add_u32 s{sT0}, s{sT0}, 4096')
        A(f'buffer_load_dwordx4 v[{RING+4*i}:{RING+4*i+3}], v{vL16}, {W}, s{sT0} offen offset:{(i%4)*1024} {ld}', ('h', i))
    WF = [OT, OT + 4, OT + 8, OT + 12]
    def w2rd(i):
        fb, ap = i // 2, i % 2
        for q in range(2):
            A(f'ds_read_b64_tr_b16 v[{WF[i%4]+2*q}:{WF[i%4]+2*q+1}], v{vTr} offset:{L_W2 + fb*2048 + (16*q + 8*ap)*64}', ('wf', i))
    for i in range(3): w2rd(i)
    for i in range(28):
        if i + 3 < 28: w2rd(i + 3)
        A.wait_ds(('wf', i)); A.wait_vm(('h', i))
        c = '0' if i == 0 else f'v[{ACB}:{ACB+15}]'
        A(f'v_mfma_f32_32x32x16_bf16 v[{ACB}:{ACB+15}], v[{WF[i%4]}:{WF[i%4]+3}], v[{RING+4*i}:{RING+4*i+3}], {c}')
    ts(3)
    A(f'''
s_lshl_b32 s{sT2}, s{sSeg}, 5
s_add_u32 s{sT2}, s{sT2}, s{sHead}
s_lshl_b32 s{sT1}, s{sT2}, 13                ; (s*32+h)*8192
''')
    for i in range(8):
        ks, ap = i // 2, i % 2
        if i % 4 == 0: A(f's_add_u32 s{sT0}, s{sT1}, {C.OFF_QX + (i//4)*4096}')
        A(f'buffer_load_dwordx4 v[{QF+4*i}:{QF+4*i+3}], v{vFr}, {W}, s{sT0} offen offset:{(ks%2)*2048 + ap*512} {ld}', ('q', i))
    for i in range(8):
        ks, ap = i // 2, i % 2
        if i % 4 == 0: A(f's_add_u32 s{sT0}, s{sT1}, {C.OFF_KX + (i//4)*4096}')
        A(f'buffer_load_dwordx4 v[{KF+4*i}:{KF+4*i+3}], v{vFr}, {W}, s{sT0} offen offset:{(ks%2)*2048 + ap*512} {ld}', ('k', i))
    A(f'''
s_and_b32 s{sT0}, s{sWave}, 1
s_lshl_b32 s{sT0}, s{sT0}, 12
s_add_u32 s{sT0}, s{sT0}, s{sT1}
s_add_u32 s{sT0}, s{sT0}, {C.OFF_VX}
''')
    for i in range(4):
        A(f'buffer_load_dwordx4 v[{VF+4*i}:{VF+4*i+3}], v{vFr}, {W}, s{sT0} offen offset:{(i//2)*2048 + (i%2)*512} {ld}', 'v')
    for i in range(8):
        A.wait_vm(('k', i))
        c = f'v[{MASK}:{MASK+15}]' if i == 0 else f'v[{SX}:{SX+15}]'
        A(f'v_mfma_f32_32x32x16_bf16 v[{SX}:{SX+15}], v[{KF+4*i}:{KF+4*i+3}], v[{QF+4*i}:{QF+4*i+3}], {c}')
    MX = vT0
    A(f'v_max3_f32 v{MX}, v{SX}, v{SX+1}, v{SX+2}')
    for i in range(3, 15, 2): A(f'v_max3_f32 v{MX}, v{MX}, v{SX+i}, v{SX+i+1}')
    A(f'v_max_f32 v{MX}, v{MX}, v{SX+15}')
    A(f'v_mov_b64 v[{VM+2}:{VM+3}], 0'); A(f'v_mov_b64 v[{VM+6}:{VM+7}], 0'); A(f'v_mov_b64 v[{PB+10}:{PB+11}], 0')
    ts(4)
    A(f's_lshl_b32 s{sT0}, s{sT2}, 12')
    A(f's_add_u32 s{sT0}, s{sT0}, {C.OFF_KMVM}')
    A(f's_mov_b32 s{sSpin}, 0')
    A('s_mov_b64 exec, 1')
    A.label('L_tl_km0')
    A(f'buffer_load_dword v{RAW}, v{vL16}, {W}, s{sT0} offen offset:3072 sc1')
    A(f's_add_u32 s{sSpin}, s{sSpin}, 1')
    A(f's_cmp_gt_u32 s{sSpin}, {SPIN_MAX}')
    A('s_cbranch_scc1 L_tl_km0x')
    A('s_waitcnt vmcnt(0)')
    A(f'v_cmp_eq_u32 vcc, -1, v{RAW}')
    A('s_cbranch_vccz L_tl_km0x')
    A('s_sleep 2')
    A('s_branch L_tl_km0')
    A.label('L_tl_km0x')
    A('s_mov_b64 exec, -1')
    A.label('L_tl_km')
    for i in range(4):
        A(f'buffer_load_dwordx4 v[{RAW+4*i}:{RAW+4*i+3}], v{vL16}, {W}, s{sT0} offen offset:{i*1024} sc1', 'raw')
    A(f's_add_u32 s{sSpin}, s{sSpin}, 1')
    A(f's_cmp_gt_u32 s{sSpin}, {SPIN_MAX}')
    A('s_cbranch_scc1 L_tl_kmok')
    A('s_waitcnt vmcnt(0)'); A.vmq = []
    A(f'v_max3_u32 v{vT1}, v{RAW}, v{RAW+1}, v{RAW+2}')
    for i in range(3, 15, 2): A(f'v_max3_u32 v{vT1}, v{vT1}, v{RAW+i}, v{RAW+i+1}')
    A(f'v_max_u32 v{vT1}, v{vT1}, v{RAW+15}')
    A(f'v_cmp_eq_u32 vcc, -1, v{vT1}')
    A('s_cbranch_vccz L_tl_kmok')
    A('s_sleep 4')
    A('s_branch L_tl_km')
    A.label('L_tl_kmok')
    A('s_waitcnt vmcnt(0)')
    ts(5)
    for i in range(4):
        A(f'ds_write2_b32 v{vKw}, v{RAW+4*i}, v{RAW+4*i+1} offset0:{(i%2)*128} offset1:{(i%2)*128+64}' if i < 2 else
          f'ds_write2_b32 v{vT1}, v{RAW+4*i}, v{RAW+4*i+1} offset0:{(i%2)*128} offset1:{(i%2)*128+64}', 'kw')
        if i == 0: A(f'v_add_u32 v{vT1}, 1024, v{vKw}'); A(f'v_add_u32 v{vT2}, 2048, v{vKw}'); A(f'v_add_u32 v{vT3}, 3072, v{vKw}')
    for i in range(4):
        A(f'ds_write2_b32 v{vT2 if i < 2 else vT3}, v{RAW+4*i+2}, v{RAW+4*i+3} offset0:{(i%2)*128} offset1:{(i%2)*128+64}', 'kw')
    for i in range(8):
        ks, ap = i // 2, i % 2
        for q in range(2):
            A(f'ds_read_b64_tr_b16 v[{KF+4*i+2*q}:{KF+4*i+2*q+1}], v{vKr} offset:{(32*ks + 16*q + 8*ap)*16}', ('km', i))
    for fb in range(2):
        A(f'ds_read_b64 v[{VM+4*fb}:{VM+4*fb+1}], v{vVr} offset:{fb*512}', 'vm')
    for i in range(8):
        A.wait_ds(('km', i))
        c = '0' if i == 0 else f'v[{SM}:{SM+15}]'
        A(f'v_mfma_f32_32x32x16_bf16 v[{SM}:{SM+15}], v[{KF+4*i}:{KF+4*i+3}], v[{QF+4*i}:{QF+4*i+3}], {c}')
    A(f'v_max3_f32 v{MX}, v{MX}, v{SM}, v{SM+1}')
    A(f'v_max3_f32 v{MX}, v{MX}, v{SM+2}, v{SM+3}')
    A(f'v_mov_b32 v{vT1}, v{MX}')
    A(f'v_permlane32_swap_b32 v{MX}, v{vT1}')
    A(f'v_max_f32 v{MX}, v{MX}, v{vT1}')
    A(f'v_mul_f32 v{MX}, s{sCc}, v{MX}')
    vals = [SX + i for i in range(16)] + [SM + i for i in range(4)]
    for r in vals: A(f'v_fma_f32 v{r}, v{r}, s{sCc}, -v{MX}')
    for r in vals: A(f'v_exp_f32 v{r}, v{r}')
    for ap in range(2):
        idx = [4*ap + b for b in range(4)] + [4*ap + 8 + b for b in range(4)]
        for i in range(4): A(f'v_cvt_pk_bf16_f32 v{PB+4*ap+i}, v{SX+idx[2*i]}, v{SX+idx[2*i+1]}')
    A(f'v_cvt_pk_bf16_f32 v{PB+8}, v{SM}, v{SM+1}'); A(f'v_cvt_pk_bf16_f32 v{PB+9}, v{SM+2}, v{SM+3}')
    A.wait_ds('vm')
    for fb in range(2):
        d = OT + 16 * fb
        A(f'v_mfma_f32_32x32x16_bf16 v[{d}:{d+15}], v[{VF+8*fb}:{VF+8*fb+3}], v[{PB}:{PB+3}], 0')
        A(f'v_mfma_f32_32x32x16_bf16 v[{d}:{d+15}], v[{VF+8*fb+4}:{VF+8*fb+7}], v[{PB+4}:{PB+7}], v[{d}:{d+15}]')
        A(f'v_mfma_f32_32x32x16_bf16 v[{d}:{d+15}], v[{VM+4*fb}:{VM+4*fb+3}], v[{PB+8}:{PB+11}], v[{d}:{d+15}]')
    LS = vT1
    A(f'v_add_f32 v{LS}, v{vals[0]}, v{vals[1]}')
    for r in vals[2:]: A(f'v_add_f32 v{LS}, v{LS}, v{r}')
    A(f'v_mov_b32 v{vT2}, v{LS}')
    A(f'v_permlane32_swap_b32 v{LS}, v{vT2}')
    A(f'v_add_f32 v{LS}, v{LS}, v{vT2}')
    A(f'v_rcp_f32 v{LS}, v{LS}')
    A(f'''
s_and_b32 s{sT0}, s{sWave}, 1
s_lshl_b32 s{sT0}, s{sT0}, 12
s_add_u32 s{sT0}, s{sT0}, s{sT1}
s_add_u32 s{sT0}, s{sT0}, {OFF_O}
''')
    for fb in range(2):
        d = OT + 16 * fb
        for r in range(16): A(f'v_mul_f32 v{d+r}, v{d+r}, v{LS}')
        for ap in range(2):
            idx = [4*ap + b for b in range(4)] + [4*ap + 8 + b for b in range(4)]
            t = SX + 8 * fb + 4 * ap
            for i in range(4): A(f'v_cvt_pk_bf16_f32 v{t+i}, v{d+idx[2*i]}, v{d+idx[2*i+1]}')
            A(f'buffer_store_dwordx4 v[{t}:{t+3}], v{vL16}, {W}, s{sT0} offen offset:{fb*2048 + ap*1024}', 'o')
    ts(6)
    def red_write(acc, which):
        for a in range(4):
            A(f'v_xor_b32 v{vT2}, {a*32}, v{vRw}')
            A(f'ds_write_b128 v{vT2}, v[{acc+4*a}:{acc+4*a+3}] offset:{which*4096}', 'rw')
    red_write(ACB, 1)
    A(f's_add_u32 s{sCnt}, s{sCnt}, 1')
    A(f's_lshl_b32 s{sT0}, s{sGrp}, 7')
    A(f's_add_u32 s{sT0}, s{sT0}, {OFF_FLG}')
    A(f's_lshl_b32 s{sT1}, s{sCb}, 2')
    A(f'v_mov_b32 v{vT0}, s{sT1}')
    A(f'v_mov_b32 v{vT1}, s{sCnt}')
    A(f'v_lshrrev_b32 v{vT3}, 2, v{vL16}')
    A('s_waitcnt vmcnt(0)'); A.vmq = []
    A('s_barrier')
    ts(7)
    A(f's_cmp_lg_u32 s{sWave}, 0')
    A('s_cbranch_scc1 L_tl_nost')
    A('s_mov_b64 exec, 1')
    A(f'buffer_store_dword v{vT1}, v{vT0}, {W}, s{sT0} offen')
    A.label('L_tl_nost')
    A('s_mov_b64 exec, 0xffff')
    A(f's_mov_b32 s{sSpin}, 0')
    A.label('L_tl_gw')
    A(f'buffer_load_dword v{vT1}, v{vT3}, {W}, s{sT0} offen sc1')
    A(f's_add_u32 s{sSpin}, s{sSpin}, 1')
    A(f's_cmp_gt_u32 s{sSpin}, {SPIN_MAX}')
    A('s_cbranch_scc1 L_tl_nosig')
    A('s_waitcnt vmcnt(0)')
    A(f'v_cmp_gt_u32 vcc, s{sCnt}, v{vT1}')
    A('s_cbranch_vccnz L_tl_gw')
    A.label('L_tl_nosig')
    A('s_waitcnt vmcnt(0)')
    A('s_mov_b64 exec, -1')
    A.vmq = []
    ts(8)
    A(f'''
s_lshl_b32 s{sT0}, s{sSeg}, 18
s_lshl_b32 s{sT1}, s{sWave}, 16
s_add_u32 s{sT0}, s{sT0}, s{sT1}
s_add_u32 s{sT0}, s{sT0}, {OFF_O}
''')
    def oload(i):
        if i % 4 == 0 and i: A(f's_add_u32 s{sT0}, s{sT0}, 4096')
        r = RING + 4 * (i % 32)
        A(f'buffer_load_dwordx4 v[{r}:{r+3}], v{vL16}, {W}, s{sT0} offen offset:{(i%4)*1024} sc1', ('o', i))
    for i in range(32): oload(i)
    for i in range(64):
        A.wait_vm(('o', i))
        r = RING + 4 * (i % 32)
        c = '0' if i == 0 else f'v[{ACA}:{ACA+15}]'
        A(f'v_mfma_f32_32x32x16_bf16 v[{ACA}:{ACA+15}], a[{4*i}:{4*i+3}], v[{r}:{r+3}], {c}')
        if i >= 1 and i + 31 < 64: oload(i + 31)
    ts(9)
    red_write(ACA, 0)
    A.wait_all(vm=False)
    A('s_barrier')
    R0 = 72
    for wv in range(4):
        for which in range(2):
            r = R0 + (which * 4 + wv) * 4
            A(f'ds_read_b128 v[{r}:{r+3}], v{vRr} offset:{wv*8192 + which*4096}', 'rr')
    A.wait_all(vm=False)
    A('s_barrier')
    for which in range(2):
        b = R0 + which * 16
        for i in range(4):
            A(f'v_add_f32 v{b+i}, v{b+i}, v{b+4+i}'); A(f'v_add_f32 v{b+8+i}, v{b+8+i}, v{b+12+i}'); A(f'v_add_f32 v{b+i}, v{b+i}, v{b+8+i}')
    def rnd(b):
        for i in range(2):
            A(f'v_cvt_pk_bf16_f32 v{vT0}, v{b+2*i}, v{b+2*i+1}')
            A(f'v_lshlrev_b32 v{b+2*i}, 16, v{vT0}'); A(f'v_and_b32 v{b+2*i+1}, 0xffff0000, v{vT0}')
    a0 = R0; b0 = R0 + 16
    rnd(a0); rnd(b0)
    for i in range(4): A(f'v_add_f32 v{b0+i}, v{b0+i}, v{BI2+i}')
    rnd(b0)
    A(f'v_sub_f32 v{vT1}, 1.0, v{vG}')
    A(f'v_cvt_pk_bf16_f32 v{vT1}, v{vT1}, v{vT1}')
    A(f'v_lshlrev_b32 v{vT1}, 16, v{vT1}')
    for i in range(4):
        A(f'v_mul_f32 v{a0+i}, v{a0+i}, v{vG}'); A(f'v_mul_f32 v{b0+i}, v{b0+i}, v{vT1}')
    rnd(a0); rnd(b0)
    for i in range(4): A(f'v_add_f32 v{a0+i}, v{a0+i}, v{b0+i}')
    A(f'v_cvt_pk_bf16_f32 v{a0}, v{a0}, v{a0+1}'); A(f'v_cvt_pk_bf16_f32 v{a0+1}, v{a0+2}, v{a0+3}')
    A(f's_lshl_b32 s{sT0}, s{sSeg}, 15')
    A(f's_lshl_b32 s{sT1}, s{sCb}, 6')
    A(f's_add_u32 s{sT0}, s{sT0}, s{sT1}')
    A(f'buffer_store_dwordx2 v[{a0}:{a0+1}], v{vOut}, s[{sOUT}:{sOUT+3}], s{sT0} offen')
    ts(10)
    A(f's_add_u32 s{sSeg}, s{sSeg}, s{sNG}')
    A(f's_cmp_lt_u32 s{sSeg}, 64')
    A('s_cbranch_scc1 L_tl_seg')

def rank_election(A, lbl, sRank, sXcc=3):
    A(f'''
s_cmp_lg_u32 s{sWave}, 0
s_cbranch_scc1 L_{lbl}_norank
s_lshl_b32 s{sRank}, s{sXcc}, 2
s_cmp_eq_u32 s{sXcc}, 0
s_cselect_b32 s{sRank}, 128, s{sRank}
v_mov_b32 v2, s{sRank}
v_mov_b32 v3, 1
s_mov_b64 exec, 1
buffer_atomic_add v3, v2, s[{sDBG}:{sDBG+3}], 0 offen sc0
s_waitcnt vmcnt(0)
s_mov_b64 exec, -1
v_readfirstlane_b32 s{sRank}, v3
v_lshlrev_b32 v2, 13, v0
v_mov_b32 v3, s{sRank}
s_mov_b64 exec, 15
ds_write_b32 v2, v3
s_mov_b64 exec, -1
s_waitcnt lgkmcnt(0)
L_{lbl}_norank:
s_barrier
v_lshrrev_b32 v2, 6, v0
v_lshlrev_b32 v2, 13, v2
ds_read_b32 v3, v2
s_waitcnt lgkmcnt(0)
v_readfirstlane_b32 s{sRank}, v3
s_nop 3
''')
    A.dsq = []; A.vmq = []

def gen_kernel(A, name='tail_kernel'):
    A.raw(f'.globl {name}\n.p2align 8\n.type {name},@function\n{name}:')
    A(f'''
s_cmp_ge_u32 s2, 256
s_cbranch_scc1 L_tl_end
s_load_dwordx2 s[{sWS}:{sWS+1}], s[0:1], 120
s_load_dwordx2 s[{sDBG}:{sDBG+1}], s[0:1], 112
s_load_dwordx2 s[{sX}:{sX+1}], s[0:1], 0
s_getreg_b32 s3, hwreg(HW_REG_XCC_ID)
s_and_b32 s3, s3, 7
v_lshrrev_b32 v1, 6, v0
s_mov_b32 s{sWS+2}, {C.WS_BYTES}
s_mov_b32 s{sWS+3}, 0x20000
s_mov_b32 s{sDBG+2}, 256
s_mov_b32 s{sDBG+3}, 0x20000
s_mov_b32 s{sX+2}, 0x200000
s_mov_b32 s{sX+3}, 0x20000
v_readfirstlane_b32 s{sWave}, v1
''')
    load_args(A)
    A('s_waitcnt lgkmcnt(0)')
    rank_election(A, 'tl', sT0)
    A(f'''
s_cmp_ge_u32 s{sT0}, 32
s_cbranch_scc1 L_tl_end
s_and_b32 s{sCb}, s{sT0}, 15
s_lshr_b32 s{sGrp}, s{sT0}, 4
s_lshl_b32 s{sT1}, s3, 1
s_add_u32 s{sGrp}, s{sGrp}, s{sT1}
s_mov_b32 s{sNG}, 16
''')
    gen_tail(A)
    A('s_waitcnt vmcnt(0)')
    A.label('L_tl_end')
    A('s_endpgm')
```

```python
import sys
from asmlib import Asm
import chain as C, stagea as S, tail as T
NAME = 'gated_mix__memory_aug_recurrent_mem_tr__dense_activation_squared_relu__prompt'
HDR = open(f'cdna_kernels/{NAME}.s.ref').read().split('; Override launch')[0]
sWS, sDBG, sWave = C.sWS, C.sDBG, C.sWave
sRank = 18
sW0 = 90
OFF_WT = C.OFF_TIM + 0x10000

def gen(timing=False, **opts):
    C.LIGHT = 1
    for k, v in opts.items(): setattr(C, k, v)
    name = NAME + '_kernel'
    A = Asm()
    A.raw(HDR.rstrip())
    A.raw('; @launch grid=(256,1,1) block=(256,1,1) lds=163840')
    A.raw(f'.amdgcn_target "amdgcn-amd-amdhsa--gfx950"\n.text\n.globl {name}\n.p2align 8\n.type {name},@function\n{name}:')
    W = f's[{sWS}:{sWS+3}]'
    A(f'''
s_cmp_ge_u32 s2, 256
s_cbranch_scc1 L_end
s_load_dwordx2 s[{sWS}:{sWS+1}], s[0:1], 120
s_load_dwordx2 s[{sDBG}:{sDBG+1}], s[0:1], 112
s_getreg_b32 s3, hwreg(HW_REG_XCC_ID)
s_and_b32 s3, s3, 7
v_lshrrev_b32 v1, 6, v0
s_mov_b32 s{sWS+2}, {C.WS_BYTES}
s_mov_b32 s{sWS+3}, 0x20000
s_mov_b32 s{sDBG+2}, 256
s_mov_b32 s{sDBG+3}, 0x20000
v_readfirstlane_b32 s{sWave}, v1
''')
    if timing: A(f's_memrealtime s[{sW0}:{sW0+1}]')
    A('s_waitcnt lgkmcnt(0)')
    T.rank_election(A, 'mg', sRank)
    A(f'''
s_cmp_ge_u32 s{sRank}, 32
s_cbranch_scc1 L_end
s_cmp_lg_u32 s3, 0
s_cbranch_scc1 L_worker
''')
    A(f'''
s_mov_b32 s{C.sH}, s{sRank}
s_load_dwordx2 s[{C.sWQ}:{C.sWQ+1}], s[0:1], 16
s_load_dwordx2 s[{C.sWK}:{C.sWK+1}], s[0:1], 24
s_load_dwordx2 s[{C.sWV}:{C.sWV+1}], s[0:1], 32
s_load_dwordx2 s[{C.sWO}:{C.sWO+1}], s[0:1], 40
s_load_dwordx2 s[{C.sM0}:{C.sM0+1}], s[0:1], 8
''')
    if timing: A(f's_mov_b32 s{C.sRt0}, s{sW0}')
    for s in (C.sWQ, C.sWK, C.sWV, C.sWO):
        A(f's_mov_b32 s{s+2}, 0x400000'); A(f's_mov_b32 s{s+3}, 0x20000')
    A(f's_mov_b32 s{C.sM0+2}, 8192'); A(f's_mov_b32 s{C.sM0+3}, 0x20000')
    A('s_waitcnt lgkmcnt(0)')
    C.gen_chain(A, timing=timing, kv_flags='sc1', mega=True)
    A('s_endpgm')
    A.label('L_worker')
    A.dsq = []; A.vmq = []
    S.load_args(A); T.load_args(A)
    def wstamp(i):
        if timing:
            A(f's_memrealtime s[{sW0+10}:{sW0+11}]'); A('s_waitcnt lgkmcnt(0)'); A(f's_sub_u32 s{sW0+2+i}, s{sW0+10}, s{sW0}')
    A(f'''
s_sub_u32 s{S.sT0}, s3, 1
s_lshl_b32 s{S.sTile}, s{S.sT0}, 5
s_add_u32 s{S.sTile}, s{S.sTile}, s{sRank}
s_mov_b32 s{S.sNW}, 256
s_and_b32 s{T.sCb}, s{sRank}, 15
s_lshr_b32 s{T.sGrp}, s{sRank}, 4
s_lshl_b32 s{S.sT0}, s{S.sT0}, 1
s_add_u32 s{T.sGrp}, s{T.sGrp}, s{S.sT0}
s_mov_b32 s{T.sNG}, 14
s_mov_b32 s{S.sFlag}, s{S.sTile}
v_and_b32 v2, 63, v0
v_lshlrev_b32 v2, 4, v2
v_mov_b32 v4, -1
v_mov_b32 v5, -1
v_mov_b32 v6, -1
v_mov_b32 v7, -1
s_lshl_b32 s{S.sT0}, s{T.sGrp}, 17
s_lshl_b32 s{S.sT1}, s{T.sCb}, 13
s_add_u32 s{S.sT0}, s{S.sT0}, s{S.sT1}
s_lshl_b32 s{S.sT1}, s{sWave}, 11
s_add_u32 s{S.sT0}, s{S.sT0}, s{S.sT1}
s_add_u32 s{S.sT0}, s{S.sT0}, {C.OFF_KMVM}
s_lshl_b32 s{S.sT1}, s{T.sGrp}, 7
s_lshl_b32 s{S.sK}, s{T.sCb}, 2
s_add_u32 s{S.sT1}, s{S.sT1}, s{S.sK}
s_add_u32 s{S.sT1}, s{S.sT1}, {T.OFF_FLG}
v_mov_b32 v8, 0
buffer_store_dword v8, v8, {W}, s{S.sT1} offen
s_mov_b32 s{S.sT1}, s{T.sGrp}
L_w_rst:
buffer_store_dwordx4 v[4:7], v2, {W}, s{S.sT0} offen sc1
buffer_store_dwordx4 v[4:7], v2, {W}, s{S.sT0} offen offset:1024 sc1
s_add_u32 s{S.sT0}, s{S.sT0}, {14 << 17}
s_add_u32 s{S.sT1}, s{S.sT1}, 14
s_cmp_lt_u32 s{S.sT1}, 64
s_cbranch_scc1 L_w_rst
s_waitcnt lgkmcnt(0)
s_barrier
''')
    wstamp(0)
    S.gen_setup(A)
    def bump(lbl, word_sgpr):
        A(f"""
v_mov_b32 v{S.vT0}, s{word_sgpr}
v_mov_b32 v{S.vT1}, 1
s_waitcnt vmcnt(0)
s_barrier
s_cmp_lg_u32 s{sWave}, 0
s_cbranch_scc1 {lbl}
s_mov_b64 exec, 1
buffer_atomic_add v{S.vT1}, v{S.vT0}, s[{sDBG}:{sDBG+3}], 0 offen
s_mov_b64 exec, -1
{lbl}:
""")
    A(f's_cmp_ge_u32 s{S.sTile}, 128'); A('s_cbranch_scc1 L_w_big')
    S.gen_mini(A, 'sc1')
    A(f's_mov_b32 s{S.sT0}, {C.DBG_KVA*4}')
    bump('L_w_s0', S.sT0)
    wstamp(7)
    A(f's_add_u32 s{S.sTile}, s{S.sTile}, 224')
    A.label('L_w_big')
    A(f's_sub_u32 s{S.sTile}, s{S.sTile}, 128')
    A(f's_mov_b32 s{S.sT0}, {C.DBG_RST*4}')
    bump('L_w_s1', S.sT0)
    def signal(A):
        A(f"""
s_cmp_lt_u32 s{S.sTile}, 96
s_cselect_b32 s{S.sT0}, {C.DBG_KVA + 1}, {C.DBG_KVA + 2}
s_add_u32 s{S.sT1}, s{S.sTb}, {C.DBG_QH}
s_cmp_lt_u32 s{S.sTile}, 256
s_cselect_b32 s{S.sT0}, s{S.sT0}, s{S.sT1}
s_lshl_b32 s{S.sT0}, s{S.sT0}, 2
""")
        bump('L_w_nosig', S.sT0)
        if timing:
            A(f's_cmp_lt_u32 s{S.sTile}, 224'); A('s_cbranch_scc0 L_w_ns1'); wstamp(1); A.label('L_w_ns1')
    def hook(i):
        A(f's_cmp_lt_u32 s{S.sTile}, 224'); A(f's_cbranch_scc0 L_w_h{i}'); wstamp(i); A.label(f'L_w_h{i}')
    S.gen_tiles(A, st_flags='sc1', signal=signal, hook=hook if timing else None)
    wstamp(2)
    def wait_inputs(A):
        A(f'''
s_lshr_b32 s{T.sT0}, s{T.sSeg}, 3
s_add_u32 s{T.sT1}, s{T.sT0}, {C.DBG_QH}
s_lshl_b32 s{T.sT1}, s{T.sT1}, 2
s_cmp_ge_u32 s{T.sT0}, 4
s_mov_b32 s{T.sT2}, {(C.DBG_KVA+1)*4}
s_mov_b32 s{T.sSpin}, 96
s_cselect_b32 s{T.sT2}, {(C.DBG_KVA+2)*4}, s{T.sT2}
s_cselect_b32 s{T.sSpin}, 128, s{T.sSpin}
s_cmp_eq_u32 s{T.sT0}, 0
s_cselect_b32 s{T.sT2}, {C.DBG_KVA*4}, s{T.sT2}
s_cselect_b32 s{T.sSpin}, 128, s{T.sSpin}
v_mov_b32 v{T.vT0}, s{T.sT2}
v_mov_b32 v{T.vT2}, s{T.sSpin}
v_writelane_b32 v{T.vT0}, s{T.sT1}, 1
v_writelane_b32 v{T.vT2}, 23, 1
s_mov_b32 s{T.sT1}, {C.DBG_RST*4}
s_mov_b32 s{T.sT2}, 224
v_writelane_b32 v{T.vT0}, s{T.sT1}, 2
v_writelane_b32 v{T.vT2}, s{T.sT2}, 2
s_mov_b32 s{T.sSpin}, 0
s_mov_b64 exec, 7
L_w_wi:
buffer_load_dword v{T.vT1}, v{T.vT0}, s[{sDBG}:{sDBG+3}], 0 offen sc1
s_add_u32 s{T.sSpin}, s{T.sSpin}, 1
s_cmp_gt_u32 s{T.sSpin}, {T.SPIN_MAX}
s_cbranch_scc1 L_w_wix
s_waitcnt vmcnt(0)
v_cmp_gt_u32 vcc, v{T.vT2}, v{T.vT1}
s_cbranch_vccz L_w_wix
s_sleep 16
s_branch L_w_wi
L_w_wix:
s_waitcnt vmcnt(0)
s_mov_b64 exec, -1
''')
        A.vmq = []
    def ts(i):
        if timing:
            A(f's_memrealtime s[{sW0+10}:{sW0+11}]'); A('s_waitcnt lgkmcnt(0)'); A.dsq = []; A(f's_sub_u32 s{24+i}, s{sW0+10}, s{sW0}')
    T.gen_tail(A, wait_inputs=wait_inputs, ts=ts)
    A('s_waitcnt vmcnt(0)')
    if timing:
        wstamp(3)
        for i in range(8): A(f'v_mov_b32 v{20+i}, s{sW0+2+i}')
        for i in range(12): A(f'v_mov_b32 v{28+i}, s{24+i}')
        A(f's_lshl_b32 s{T.sT0}, s{S.sFlag}, 7'); A(f's_add_u32 s{T.sT0}, s{T.sT0}, {OFF_WT}')
        A('v_mov_b32 v2, 0'); A('s_mov_b64 exec, 1')
        A(f'buffer_store_dwordx4 v[20:23], v2, {W}, s{T.sT0} offen'); [A(f'buffer_store_dwordx4 v[{20+4*i}:{23+4*i}], v2, {W}, s{T.sT0} offen offset:{16*i}') for i in range(1, 5)]; A('s_waitcnt vmcnt(0)')
    A.label('L_end')
    A('s_endpgm')
    A.raw('.section .rodata,"a"\n.p2align 6\n' + S.KD.format(name=name))
    return A.text()
if __name__ == '__main__':
    open(sys.argv[1], 'w').write(gen(timing=len(sys.argv) > 2))
```
